```python
import torch

def _softmax(x, axis=-1):
    return torch.softmax(x, dim=axis)
def _gelu(x):
    return torch.nn.functional.gelu(x, approximate="tanh")
def _silu(x):
    return torch.nn.functional.silu(x)
def _sigmoid(x):
    return torch.sigmoid(x)
def _layernorm(x, axis=-1, eps=1e-5):
    m = x.mean(dim=axis, keepdim=True)
    v = x.var(dim=axis, keepdim=True, unbiased=False)
    return (x - m) / torch.sqrt(v + eps)
def _scatter_add(tgt, idx, src, axis=0):
    return tgt.clone().index_add_(axis, idx, src)
def _segment_sum(src, seg, n):
    out = torch.zeros((n,) + src.shape[1:], dtype=src.dtype)
    return out.index_add_(0, seg, src)
def _pad(x, pw):
    flat = tuple(v for pair in reversed(pw) for v in pair)
    return torch.nn.functional.pad(x, flat)

kernel_name = 'concat_heads__mha_block_cached__gqa_block_cached__near_ridge'

def setup_inputs():

    _w = (lambda a: (lambda t: t.to(torch.bfloat16) if t.is_floating_point() else t)(torch.as_tensor(a)))
    def _A_setup():
        B, Sq, D = 8, 128, 512
        H, Sk, Dh = 32, 512, 128
        return {
            "x": _w((lambda *s: torch.randn(*s, dtype=torch.bfloat16) * 0.8)(B, Sq, D)),
            "k_cache": _w((lambda *s: torch.randn(*s, dtype=torch.bfloat16) * 0.8)(B, H, Sk, Dh)),
            "v_cache": _w((lambda *s: torch.randn(*s, dtype=torch.bfloat16) * 0.05)(B, H, Sk, Dh)),
            "wq": _w((lambda *s: torch.randn(*s, dtype=torch.bfloat16) * 0.8)(D, H * Dh) * (D ** -0.5)),
            "wo": _w((lambda *s: torch.randn(*s, dtype=torch.bfloat16) * 0.05)(H * Dh, D) * ((H * Dh) ** -0.5)),
        }
    _A_in = _A_setup()

    def _B_setup():
        B, Sq, D = 8, 128, 512
        Hq, Hkv, Sk, Dh = 32, 32, 512, 128
        assert Hq % Hkv == 0, (Hq, Hkv)
        return {
            "x": _w((lambda *s: torch.randn(*s, dtype=torch.bfloat16) * 0.8)(B, Sq, D)),
            "k_cache": _w((lambda *s: torch.randn(*s, dtype=torch.bfloat16) * 0.8)(B, Hkv, Sk, Dh)),
            "v_cache": _w((lambda *s: torch.randn(*s, dtype=torch.bfloat16) * 0.05)(B, Hkv, Sk, Dh)),
            "wq": _w((lambda *s: torch.randn(*s, dtype=torch.bfloat16) * 0.8)(D, Hq * Dh) * (D ** -0.5)),
            "wo": _w((lambda *s: torch.randn(*s, dtype=torch.bfloat16) * 0.05)(Hq * Dh, D) * ((Hq * Dh) ** -0.5)),
        }
    _B_in = _B_setup()

    return {
        "A_x": _A_in["x"],
        "A_k_cache": _A_in["k_cache"],
        "A_v_cache": _A_in["v_cache"],
        "A_wq": _A_in["wq"],
        "A_wo": _A_in["wo"],
        "B_x": _B_in["x"],
        "B_k_cache": _B_in["k_cache"],
        "B_v_cache": _B_in["v_cache"],
        "B_wq": _B_in["wq"],
        "B_wo": _B_in["wo"],
    }

def reference(A_x, A_k_cache, A_v_cache, A_wq, A_wo, B_x, B_k_cache, B_v_cache, B_wq, B_wo):
    def _A_ref(x, k_cache, v_cache, wq, wo):
        B, Sq, D = x.shape
        H, Dh = 32, 128
        q = (lambda x, *d: x.permute(*d))((x @ wq).reshape(B, Sq, H, Dh), 0, 2, 1, 3)
        scores = torch.einsum("bhqd,bhkd->bhqk", q, k_cache) * (Dh ** -0.5)
        p = _softmax(scores, axis=-1)
        o = torch.einsum("bhqk,bhkd->bhqd", p, v_cache)
        return (lambda x, *d: x.permute(*d))(o, 0, 2, 1, 3).reshape(B, Sq, H * Dh) @ wo

    def _B_ref(x, k_cache, v_cache, wq, wo):
        B, Sq, D = x.shape
        Hq, Dh = 32, 128
        Hkv = k_cache.shape[1]
        rep = Hq // Hkv
        q = (lambda x, *d: x.permute(*d))((x @ wq).reshape(B, Sq, Hq, Dh), 0, 2, 1, 3)
        k = (lambda x, n, axis: torch.repeat_interleave(x, n, dim=axis))(k_cache, rep, axis=1)
        v = (lambda x, n, axis: torch.repeat_interleave(x, n, dim=axis))(v_cache, rep, axis=1)
        scores = torch.einsum("bhqd,bhkd->bhqk", q, k) * (Dh ** -0.5)
        p = _softmax(scores, axis=-1)
        o = torch.einsum("bhqk,bhkd->bhqd", p, v)
        return (lambda x, *d: x.permute(*d))(o, 0, 2, 1, 3).reshape(B, Sq, Hq * Dh) @ wo

    a = _A_ref(A_x, A_k_cache, A_v_cache, A_wq, A_wo)
    b = _B_ref(B_x, B_k_cache, B_v_cache, B_wq, B_wo)
    return torch.concatenate([a, b], axis=-1)
```

```python
import sys, os
NAME="concat_heads__mha_block_cached__gqa_block_cached__near_ridge"
OPT=dict(a.split("=") for a in sys.argv[1:] if "=" in a)
def opt(k,d): return OPT.get(k,d)
KVP=opt("kv","nt"); WP=opt("w",""); XP=opt("x",""); OSP=opt("os",""); OLP=opt("ol",""); WOP=opt("wo",""); OUTP=opt("out","")
o=[]
def a(s): o.append(s)
def vr(b,n): return f"v[{b}:{b+n-1}]"
def desc(name,vg):
    return f'''.amdhsa_kernel {name}
  .amdhsa_next_free_vgpr {vg}
  .amdhsa_next_free_sgpr 102
  .amdhsa_accum_offset {vg}
  .amdhsa_group_segment_fixed_size 0
  .amdhsa_kernarg_size 104
  .amdhsa_user_sgpr_count 2
  .amdhsa_user_sgpr_kernarg_segment_ptr 1
  .amdhsa_system_sgpr_workgroup_id_x 1
.end_amdhsa_kernel'''
def head(name): a(f".globl {name}\n.p2align 8\n.type {name},@function\n{name}:")
def srd(d,a_lo,b_lo,size):
    if b_lo is None: a(f"s_mov_b32 s{d}, s{a_lo}\ns_mov_b32 s{d+1}, s{a_lo+1}")
    else: a(f"s_cselect_b32 s{d}, s{b_lo}, s{a_lo}\ns_cselect_b32 s{d+1}, s{b_lo+1}, s{a_lo+1}")
    a(f"s_mov_b32 s{d+2}, {size:#x}\ns_mov_b32 s{d+3}, 0x00020000")
def mfma(d,x,y,c): a(f"v_mfma_f32_32x32x16_bf16 {vr(d,16)}, {vr(x,4)}, {vr(y,4)}, {c if isinstance(c,str) else vr(c,16)}")
K1=NAME+"_kernel"; K2=NAME+"_oproj_kernel"
a(open("cdna_kernels/"+NAME+".s.ref").read().split("; Override")[0].rstrip())
a(f"; @launch kernel={K1} grid=(256,1,1) block=(512,1,1) lds=163840")
a(f"; @launch kernel={K2} grid=(256,1,1) block=(512,1,1) lds=131072")
a('.amdgcn_target "amdgcn-amd-amdhsa--gfx950"\n.text')
def ptrs():
    a("s_load_dwordx16 s[4:19], s[0:1], 0\ns_load_dwordx8 s[20:27], s[0:1], 64\ns_load_dwordx2 s[28:29], s[0:1], 96")
def kernel1():
    head(K1)
    a("s_cmp_ge_u32 s2, 256\ns_cbranch_scc1 L1_end")
    ptrs()
    SX,SK,SV,SW,SO=32,36,40,44,48
    sW,sHalf,sQb,sHead,sB,sBr=52,53,54,55,56,57
    sKV,sT,sT2,sSlot,sPrev,sIt,sC,sLw,sOff=58,59,60,61,62,63,64,65,66
    sEv,sOd,sLo,sHi=68,70,72,74
    vL,vDK,vDV,vDW,vX,vWA,vK0,vV0=1,2,3,4,5,6,10,11
    vM,vLs,vT0,vT1,vT2,vT3=12,13,14,15,16,17
    vLs2=18
    vA=20
    vQ=28
    vO=60
    vS=124
    vP=156
    vF=172
    vXF=128
    vWF=28
    vXT=12
    a(f"v_lshrrev_b32 v{vT0}, 6, v0\nv_and_b32 v{vL}, 63, v0\nv_readfirstlane_b32 s{sW}, v{vT0}")
    a(f"s_and_b32 s{sBr}, s2, 1\ns_lshr_b32 s{sT}, s2, 1\ns_and_b32 s{sT}, s{sT}, 3\ns_lshl_b32 s{sT}, s{sT}, 3")
    a(f"s_lshr_b32 s{sT2}, s2, 3\ns_and_b32 s{sT2}, s{sT2}, 7\ns_add_u32 s{sHead}, s{sT}, s{sT2}")
    a(f"s_lshr_b32 s{sHalf}, s{sW}, 2\ns_and_b32 s{sQb}, s{sW}, 3\ns_lshr_b32 s{sB}, s2, 6\ns_lshl_b32 s{sB}, s{sB}, 1\ns_add_u32 s{sB}, s{sB}, s{sHalf}")
    a(f"v_lshrrev_b32 v{vT0}, 4, v{vL}\nv_and_b32 v{vT1}, 15, v{vL}\nv_lshlrev_b32 v{vT2}, 2, v{vT0}\nv_xor_b32 v{vT1}, v{vT1}, v{vT2}")
    a(f"v_lshlrev_b32 v{vT2}, 4, v{vT1}\nv_lshl_add_u32 v{vDW}, v{vT0}, 13, v{vT2}\nv_lshl_add_u32 v{vDV}, v{vT0}, 8, v{vT2}")
    a(f"v_xor_b32 v{vT1}, s{sQb}, v{vT1}\nv_lshlrev_b32 v{vT2}, 4, v{vT1}\nv_lshl_add_u32 v{vDK}, v{vT0}, 8, v{vT2}")
    a(f"v_bfe_u32 v{vT0}, v{vL}, 2, 3\nv_lshlrev_b32 v{vT0}, 12, v{vT0}\nv_lshrrev_b32 v{vT1}, 5, v{vL}\nv_lshlrev_b32 v{vT1}, 6, v{vT1}")
    a(f"v_and_b32 v{vT2}, 3, v{vL}\nv_lshlrev_b32 v{vT2}, 4, v{vT2}\nv_add3_u32 v{vX}, v{vT0}, v{vT1}, v{vT2}")
    a("s_waitcnt lgkmcnt(0)")
    a(f"s_cmp_eq_u32 s{sBr}, 1")
    srd(SX,4,14,0x100000); srd(SK,6,16,0x2000000); srd(SV,8,18,0x2000000); srd(SW,10,20,0x400000); srd(SO,28,None,0x1000000)
    sXo,sWo=76,77
    a(f"s_lshl_b32 s{sXo}, s{sB}, 2\ns_add_u32 s{sXo}, s{sXo}, s{sQb}\ns_lshl_b32 s{sXo}, s{sXo}, 15")
    a(f"s_lshl_b32 s{sWo}, s{sW}, 16\ns_lshl_b32 s{sT}, s{sHead}, 8\ns_add_u32 s{sWo}, s{sWo}, s{sT}")
    a(f"s_lshl_b32 s{sKV}, s{sB}, 5\ns_add_u32 s{sKV}, s{sKV}, s{sHead}\ns_lshl_b32 s{sKV}, s{sKV}, 17\ns_lshl_b32 s{sT}, s{sQb}, 12\ns_add_u32 s{sKV}, s{sKV}, s{sT}")
    a(f"s_lshl_b32 s{sLw}, s{sW}, 12")
    a(f"s_lshl_b32 s{sT2}, s{sW}, 11")
    for j in range(8):
        for n in range(2):
            a(f"s_add_u32 m0, s{sT2}, {j*16384+n*1024}\ns_add_u32 s{sT}, s{sWo}, {(64*j+4*n)*8192}")
            a(f"buffer_load_dwordx4 v{vDW}, s[{SW}:{SW+3}], s{sT} offen {WP} lds")
        for i in range(4):
            a(f"buffer_load_dwordx4 {vr(vXF+16*j+4*i,4)}, v{vX}, s[{SX}:{SX+3}], s{sXo} offen offset:{i*1024+j*128} {XP}")
    def kvload(srdr,vd,slot,soff):
        if isinstance(slot,int): a(f"s_add_u32 m0, s{sLw}, {slot*32768}")
        else: a(f"s_add_u32 m0, s{sLw}, {slot}")
        a("s_nop 0")
        for n in range(4): a(f"buffer_load_dwordx4 v{vd}, s[{srdr}:{srdr+3}], s{soff} offen offset:{n*1024} {KVP} lds")
    kvload(SK,vDK,4,sKV)
    a(f"v_bfe_u32 v{vT0}, v{vL}, 2, 2\nv_lshrrev_b32 v{vT1}, 5, v{vL}\nv_bfe_u32 v{vT2}, v{vL}, 4, 1")
    a(f"v_mul_u32_u24 v{vT3}, 320, v{vT0}\nv_lshl_add_u32 v{vT3}, v{vT2}, 5, v{vT3}")
    a(f"v_lshl_add_u32 v{vWA}, v{vT1}, 13, v{vT3}\nv_and_b32 v{vT2}, 1, v{vL}\nv_lshl_add_u32 v{vWA}, v{vT2}, 4, v{vWA}\nv_bfe_u32 v{vT2}, v{vL}, 1, 1\nv_lshl_add_u32 v{vWA}, v{vT2}, 3, v{vWA}")
    for db in range(1,4): a(f"v_xor_b32 v{vWA+db}, {db*64}, v{vWA}")
    a(f"v_lshl_add_u32 v{vV0}, v{vT1}, 12, v{vT3}\nv_and_b32 v{vT2}, 3, v{vL}\nv_lshl_add_u32 v{vV0}, v{vT2}, 3, v{vV0}")
    a(f"s_lshl_b32 s{sT}, s{sHalf}, 14\nv_add_u32 v{vV0}, s{sT}, v{vV0}")
    a(f"v_lshlrev_b32 v{vK0}, 12, v{vT0}\nv_bfe_u32 v{vT3}, v{vL}, 4, 1\nv_lshl_add_u32 v{vK0}, v{vT3}, 10, v{vK0}\nv_lshl_add_u32 v{vK0}, v{vT2}, 8, v{vK0}")
    a(f"v_lshl_add_u32 v{vT3}, v{vT2}, 2, v{vT0}\nv_xor_b32 v{vT3}, v{vT3}, v{vT1}\nv_lshl_add_u32 v{vK0}, v{vT3}, 4, v{vK0}\nv_add_u32 v{vK0}, s{sT}, v{vK0}")
    for r,v in ((sEv,0x55555555),(sOd,0xaaaaaaaa),(sLo,0x33333333),(sHi,0xcccccccc)): a(f"s_mov_b32 s{r}, {v:#x}\ns_mov_b32 s{r+1}, {v:#x}")
    a(f"s_add_u32 s{sOff}, s{sKV}, 16384")
    issued=52
    for j in range(8):
        a(f"s_waitcnt vmcnt({issued-6*(j+1)})\ns_barrier")
        if j==2: kvload(SV,vDV,0,sKV); issued+=4
        if j==4: kvload(SK,vDK,1,sOff); issued+=4
        if j==6: kvload(SV,vDV,2,sOff); issued+=4
        if j==4:
            for db in range(4): a(f"v_add_u32 v{vWA+db}, 0x10000, v{vWA+db}")
        base=(j&3)*16384
        def wread(js):
            for db in range(4):
                for rd in range(2): a(f"ds_read_b64_tr_b16 {vr(vWF+(js&1)*16+db*4+rd*2,2)}, v{vWA+db} offset:{base+(8*js+4*rd)*256}")
        wread(0)
        X=vXF+16*j
        def stage(src,dst,bit,mk,mo,perm):
            a(f"s_mov_b64 vcc, s[{mk}:{mk+1}]")
            for i in range(4):
                if i&bit: continue
                for d in range(4): a(f"v_cndmask_b32_dpp v{dst+4*i+d}, v{src+4*(i^bit)+d}, v{src+4*i+d}, vcc quad_perm:{perm} row_mask:0xf bank_mask:0xf")
            a(f"s_mov_b64 vcc, s[{mo}:{mo+1}]")
            for i in range(4):
                if not i&bit: continue
                for d in range(4): a(f"v_cndmask_b32_dpp v{dst+4*i+d}, v{src+4*(i^bit)+d}, v{src+4*i+d}, vcc quad_perm:{perm} row_mask:0xf bank_mask:0xf")
        stage(X,vXT,1,sEv,sOd,"[1,0,3,2]")
        a("s_nop 0")
        stage(vXT,X,2,sLo,sHi,"[2,3,0,1]")
        for js in range(4):
            if js<3: wread(js+1); a("s_waitcnt lgkmcnt(8)")
            else: a("s_waitcnt lgkmcnt(0)")
            for db in range(4): mfma(vO+16*db, vWF+(js&1)*16+db*4, X+4*js, "0" if (j==0 and js==0) else vO+16*db)
    a("s_nop 7\ns_nop 3")
    for i in range(32): a(f"v_cvt_pk_bf16_f32 v{vQ+i}, v{vO+2*i}, v{vO+2*i+1}")
    for i in range(64): a(f"v_mov_b32 v{vO+i}, 0")
    a(f"v_mov_b32 v{vM}, 0xff800000\nv_mov_b32 v{vLs}, 0\nv_mov_b32 v{vLs2}, 0")
    a(f"s_mov_b32 s{sC}, 0x3e0293ee")
    a(f"s_mov_b32 s{sSlot}, {4*32768}\ns_mov_b32 s{sPrev}, {3*32768}\ns_mov_b32 s{sIt}, 0\ns_add_u32 s{sOff}, s{sKV}, 32768")
    def adv():
        a(f"s_mov_b32 s{sPrev}, s{sSlot}\ns_add_u32 s{sSlot}, s{sSlot}, 32768\ns_cmp_eq_u32 s{sSlot}, {5*32768}\ns_cselect_b32 s{sSlot}, 0, s{sSlot}")
    a("L1_loop:")
    a(f"v_add_u32 v{vA}, s{sSlot}, v{vK0}")
    for s in range(1,8): a(f"v_xor_b32 v{vA+s}, {s<<5}, v{vA}")
    a("s_waitcnt vmcnt(12)\ns_barrier")
    for blk in range(2):
        for s in range(8): a(f"ds_read_b128 {vr(vF+32*blk+4*s,4)}, v{vA+s} offset:{blk*2048}")
        if blk==0: kvload(SK,vDK,f"s{sPrev}",sOff)
    for blk in range(2):
        for s in range(8):
            a(f"s_waitcnt lgkmcnt({15-8*blk-s})")
            mfma(vS+16*blk, vF+32*blk+4*s, vQ+4*s, "0" if s==0 else vS+16*blk)
    adv()
    a(f"v_add_u32 v{vA}, s{sSlot}, v{vV0}")
    for db in range(1,4): a(f"v_xor_b32 v{vA+db}, {db*64}, v{vA}")
    a(f"v_max3_f32 v{vT0}, v{vS}, v{vS+1}, v{vS+2}")
    for i in range(3,15,2): a(f"v_max3_f32 v{vT0}, v{vS+i}, v{vS+i+1}, v{vT0}")
    a(f"v_max3_f32 v{vT1}, v{vS+16}, v{vS+17}, v{vS+15}")
    for i in range(18,32,2): a(f"v_max3_f32 v{vT1}, v{vS+i}, v{vS+i+1}, v{vT1}")
    a(f"v_max_f32 v{vT0}, v{vT0}, v{vT1}\nv_mul_f32 v{vT0}, s{sC}, v{vT0}\nv_add_f32 v{vT2}, 0x41000000, v{vM}\nv_mov_b32 v{vT1}, v{vT0}\ns_nop 1")
    a(f"v_permlane32_swap_b32 v{vT0}, v{vT1}\ns_nop 1\nv_max_f32 v{vT0}, v{vT0}, v{vT1}")
    a(f"v_cmp_gt_f32 vcc, v{vT0}, v{vT2}\ns_cbranch_vccz L1_norescale")
    a(f"v_max_f32 v{vT0}, v{vT0}, v{vM}\nv_sub_f32 v{vT1}, v{vM}, v{vT0}\nv_exp_f32 v{vT1}, v{vT1}\nv_mov_b32 v{vM}, v{vT0}")
    a(f"v_mul_f32 v{vLs}, v{vT1}, v{vLs}\nv_mul_f32 v{vLs2}, v{vT1}, v{vLs2}")
    for i in range(64): a(f"v_mul_f32 v{vO+i}, v{vT1}, v{vO+i}")
    a("L1_norescale:")
    for i in range(32): a(f"v_fma_f32 v{vS+i}, v{vS+i}, s{sC}, -v{vM}")
    for i in range(0,32,2):
        a(f"v_exp_f32 v{vS+i}, v{vS+i}\nv_exp_f32 v{vS+i+1}, v{vS+i+1}")
        if i: a(f"v_add_f32 v{vLs}, v{vLs}, v{vS+i-2}\nv_add_f32 v{vLs2}, v{vLs2}, v{vS+i-1}\nv_cvt_pk_bf16_f32 v{vP+i//2-1}, v{vS+i-2}, v{vS+i-1}")
    a(f"s_nop 0\nv_add_f32 v{vLs}, v{vLs}, v{vS+30}\nv_add_f32 v{vLs2}, v{vLs2}, v{vS+31}\nv_cvt_pk_bf16_f32 v{vP+15}, v{vS+30}, v{vS+31}")
    a("s_waitcnt vmcnt(12)\ns_barrier")
    def vread(ks):
        for db in range(4):
            for rd in range(2): a(f"ds_read_b64_tr_b16 {vr(vF+16*ks+4*db+2*rd,2)}, v{vA+db} offset:{(32*rd+4*ks)*256}")
    vread(0); kvload(SV,vDV,f"s{sPrev}",sOff)
    for ks in range(4):
        if ks<3: vread(ks+1); a("s_waitcnt lgkmcnt(8)")
        else: a("s_waitcnt lgkmcnt(0)")
        for db in range(4): mfma(vO+16*db, vF+16*ks+4*db, vP+4*ks, vO+16*db)
    adv()
    a(f"s_add_u32 s{sOff}, s{sOff}, 16384\ns_add_u32 s{sIt}, s{sIt}, 1\ns_cmp_ge_u32 s{sIt}, 6\ns_cselect_b32 s{SK+2}, 0, s{SK+2}\ns_cselect_b32 s{SV+2}, 0, s{SV+2}")
    a(f"s_cmp_lt_u32 s{sIt}, 8\ns_cbranch_scc1 L1_loop")
    a(f"v_add_f32 v{vLs}, v{vLs}, v{vLs2}\nv_lshlrev_b32 v{vT3}, 4, v{vL}\nv_mov_b32 v{vT1}, v{vLs}\ns_nop 1\nv_permlane32_swap_b32 v{vLs}, v{vT1}\ns_nop 1\nv_add_f32 v{vLs}, v{vLs}, v{vT1}\nv_rcp_f32 v{vT0}, v{vLs}")
    a(f"s_lshl_b32 s{sT}, s{sBr}, 3\ns_add_u32 s{sT}, s{sT}, s{sB}\ns_lshl_b32 s{sT}, s{sT}, 2\ns_add_u32 s{sT}, s{sT}, s{sQb}\ns_lshl_b32 s{sT}, s{sT}, 5\ns_add_u32 s{sT}, s{sT}, s{sHead}\ns_lshl_b32 s{sT}, s{sT}, 13\ns_add_u32 s{sT2}, s{sT}, 4096")
    for f in range(8):
        for i in range(8): a(f"v_mul_f32 v{vO+8*f+i}, v{vT0}, v{vO+8*f+i}")
        for i in range(4): a(f"v_cvt_pk_bf16_f32 v{vF+4*f+i}, v{vO+8*f+2*i}, v{vO+8*f+2*i+1}")
        a(f"buffer_store_dwordx4 {vr(vF+4*f,4)}, v{vT3}, s[{SO}:{SO+3}], s{sT if f<4 else sT2} offen offset:{(f&3)*1024} {OSP}")
    a("s_waitcnt vmcnt(0)\nL1_end:\ns_endpgm")
def kernel2():
    head(K2)
    a("s_cmp_ge_u32 s2, 256\ns_cbranch_scc1 L2_end")
    ptrs()
    SW,SO,SD=32,36,40
    sW,sBr,sRt,sCt,sT,sT2,sO0,sO1,sWo,sLw=52,53,54,55,56,57,58,59,60,61
    vL,vOA,vDW,vA0,vA1,vT0,vT1,vT2,vT3=1,2,3,4,5,6,7,8,9
    vAcc=12; vWF=76; vOF=92; D=8
    a(f"v_lshrrev_b32 v{vT0}, 6, v0\nv_and_b32 v{vL}, 63, v0\nv_readfirstlane_b32 s{sW}, v{vT0}")
    a(f"s_and_b32 s{sBr}, s2, 1\ns_lshr_b32 s{sT}, s2, 1\ns_and_b32 s{sT}, s{sT}, 3\ns_lshl_b32 s{sT}, s{sT}, 2\ns_lshr_b32 s{sT2}, s2, 3\ns_and_b32 s{sT2}, s{sT2}, 3\ns_add_u32 s{sRt}, s{sT}, s{sT2}\ns_lshr_b32 s{sCt}, s2, 5")
    a(f"v_lshlrev_b32 v{vOA}, 4, v{vL}")
    a(f"v_lshrrev_b32 v{vT0}, 3, v{vL}\nv_and_b32 v{vT1}, 7, v{vL}\nv_bfe_u32 v{vT2}, v{vL}, 4, 1\nv_lshlrev_b32 v{vT2}, 2, v{vT2}\nv_xor_b32 v{vT1}, v{vT1}, v{vT2}\nv_lshlrev_b32 v{vT1}, 4, v{vT1}\nv_lshl_add_u32 v{vDW}, v{vT0}, 10, v{vT1}")
    a("s_waitcnt lgkmcnt(0)")
    a(f"s_cmp_eq_u32 s{sBr}, 1")
    srd(SW,12,22,0x400000); srd(SO,28,None,0x1000000); srd(SD,24,None,0x200000)
    a(f"s_lshl_b32 s{sO0}, s{sBr}, 4\ns_add_u32 s{sO0}, s{sO0}, s{sRt}\ns_lshl_b32 s{sO0}, s{sO0}, 19\ns_lshl_b32 s{sT}, s{sW}, 15\ns_add_u32 s{sO0}, s{sO0}, s{sT}\ns_add_u32 s{sO1}, s{sO0}, 0x40000")
    a(f"s_lshl_b32 s{sWo}, s{sW}, 19\ns_lshl_b32 s{sT}, s{sCt}, 7\ns_add_u32 s{sWo}, s{sWo}, s{sT}\ns_lshl_b32 s{sLw}, s{sW}, 14")
    def load(s):
        sl=s%D
        for n in range(2):
            a(f"s_add_u32 m0, s{sLw}, {sl*2048+n*1024}\ns_add_u32 s{sT}, s{sWo}, {(16*s+8*n)*1024}")
            a(f"buffer_load_dwordx4 v{vDW}, s[{SW}:{SW+3}], s{sT} offen {WOP} lds")
        if s%4==0 and s: a(f"s_add_u32 s{sO0}, s{sO0}, 4096\ns_add_u32 s{sO1}, s{sO1}, 4096")
        for rb in range(2): a(f"buffer_load_dwordx4 {vr(vOF+8*sl+4*rb,4)}, v{vOA}, s[{SO}:{SO+3}], s{sO1 if rb else sO0} offen offset:{(s&3)*1024} {OLP}")
    for s in range(D): load(s)
    a(f"v_bfe_u32 v{vT0}, v{vL}, 2, 2\nv_lshrrev_b32 v{vT1}, 5, v{vL}\nv_lshl_add_u32 v{vT1}, v{vT1}, 2, v{vT0}\nv_lshlrev_b32 v{vA0}, 7, v{vT1}")
    a(f"v_lshrrev_b32 v{vT0}, 1, v{vT0}\nv_lshl_add_u32 v{vA0}, v{vT0}, 6, v{vA0}\nv_and_b32 v{vT0}, 1, v{vL}\nv_lshl_add_u32 v{vA0}, v{vT0}, 5, v{vA0}")
    a(f"v_bfe_u32 v{vT0}, v{vL}, 4, 1\nv_lshl_add_u32 v{vA0}, v{vT0}, 4, v{vA0}\nv_bfe_u32 v{vT0}, v{vL}, 1, 1\nv_lshl_add_u32 v{vA0}, v{vT0}, 3, v{vA0}")
    a(f"v_add_u32 v{vA0}, s{sLw}, v{vA0}\nv_xor_b32 v{vA1}, 64, v{vA0}")
    def wread(s):
        for nb in range(2):
            for rd in range(2): a(f"ds_read_b64_tr_b16 {vr(vWF+(s&1)*8+nb*4+rd*2,2)}, v{vA1 if nb else vA0} offset:{(s%D)*2048+rd*1024}")
    NS=32
    a(f"s_waitcnt vmcnt({4*(D-1)})"); wread(0)
    for s in range(NS):
        if s+1<NS:
            a(f"s_waitcnt vmcnt({4*(min(NS,s+D)-(s+2))})"); wread(s+1); a("s_waitcnt lgkmcnt(4)")
        else: a("s_waitcnt lgkmcnt(0)")
        for nb in range(2):
            for rb in range(2): mfma(vAcc+16*(2*nb+rb), vWF+(s&1)*8+nb*4, vOF+8*(s%D)+4*rb, "0" if s==0 else vAcc+16*(2*nb+rb))
        if s+D<NS: load(s+D)
    a(f"v_add_u32 v{vT0}, s{sLw}, v{vOA}\ns_lshl_b32 s{sT}, s{sW}, 11\nv_add_u32 v{vT1}, s{sT}, v{vOA}\nv_add_u32 v{vT2}, 0x10000, v{vT1}\ns_nop 7")
    for p in range(16): a(f"ds_write_b128 v{vT0}, {vr(vAcc+4*p,4)} offset:{p*1024}")
    a("s_waitcnt lgkmcnt(0)\ns_barrier")
    for w in range(8):
        for p in range(2): a(f"ds_read_b128 {vr(vAcc+8*w+4*p,4)}, v{vT1 if w<4 else vT2} offset:{(w&3)*16384+p*1024}")
    a(f"v_and_b32 v{vT0}, 31, v{vL}\nv_lshlrev_b32 v{vT0}, 11, v{vT0}\nv_lshrrev_b32 v{vT3}, 5, v{vL}\nv_lshl_add_u32 v{vT0}, v{vT3}, 5, v{vT0}")
    a(f"s_lshl_b32 s{sT}, s{sRt}, 1\ns_bfe_u32 s{sT2}, s{sW}, 0x10001\ns_add_u32 s{sT}, s{sT}, s{sT2}\ns_lshl_b32 s{sT}, s{sT}, 16")
    a(f"s_lshl_b32 s{sT2}, s{sBr}, 10\ns_add_u32 s{sT}, s{sT}, s{sT2}\ns_lshl_b32 s{sT2}, s{sCt}, 7\ns_add_u32 s{sT}, s{sT}, s{sT2}")
    a(f"s_lshr_b32 s{sT2}, s{sW}, 2\ns_lshl_b32 s{sT2}, s{sT2}, 6\ns_add_u32 s{sT}, s{sT}, s{sT2}\ns_and_b32 s{sT2}, s{sW}, 1\ns_lshl_b32 s{sT2}, s{sT2}, 4\ns_add_u32 s{sT}, s{sT}, s{sT2}")
    for w in range(1,8):
        a(f"s_waitcnt lgkmcnt({14-2*w})")
        for i in range(8): a(f"v_add_f32 v{vAcc+i}, v{vAcc+i}, v{vAcc+8*w+i}")
    for i in range(4): a(f"v_cvt_pk_bf16_f32 v{vWF+i}, v{vAcc+2*i}, v{vAcc+2*i+1}")
    a(f"buffer_store_dwordx4 {vr(vWF,4)}, v{vT0}, s[{SD}:{SD+3}], s{sT} offen {OUTP}")
    a("s_waitcnt vmcnt(0)\nL2_end:\ns_endpgm")
kernel1(); kernel2()
a('.section .rodata,"a"\n.p2align 6'); a(desc(K1,256)); a(".p2align 6"); a(desc(K2,160))
print("\n".join(o))
```

```python
import sys, os
NAME="concat_heads__mha_block_cached__gqa_block_cached__near_ridge"
OPT=dict(a.split("=") for a in sys.argv[1:] if "=" in a)
def opt(k,d): return OPT.get(k,d)
KVP=opt("kv","nt"); WP=opt("w",""); XP=opt("x",""); OSP=opt("os",""); OLP=opt("ol",""); WOP=opt("wo",""); OUTP=opt("out","")
o=[]
def a(s): o.append(s)
def vr(b,n): return f"v[{b}:{b+n-1}]"
def desc(name,vg):
    return f'''.amdhsa_kernel {name}
  .amdhsa_next_free_vgpr {vg}
  .amdhsa_next_free_sgpr 102
  .amdhsa_accum_offset {vg}
  .amdhsa_group_segment_fixed_size 0
  .amdhsa_kernarg_size 104
  .amdhsa_user_sgpr_count 2
  .amdhsa_user_sgpr_kernarg_segment_ptr 1
  .amdhsa_system_sgpr_workgroup_id_x 1
.end_amdhsa_kernel'''
def head(name): a(f".globl {name}\n.p2align 8\n.type {name},@function\n{name}:")
def srd(d,a_lo,b_lo,size):
    if b_lo is None: a(f"s_mov_b32 s{d}, s{a_lo}\ns_mov_b32 s{d+1}, s{a_lo+1}")
    else: a(f"s_cselect_b32 s{d}, s{b_lo}, s{a_lo}\ns_cselect_b32 s{d+1}, s{b_lo+1}, s{a_lo+1}")
    a(f"s_mov_b32 s{d+2}, {size:#x}\ns_mov_b32 s{d+3}, 0x00020000")
def mfma(d,x,y,c): a(f"v_mfma_f32_32x32x16_bf16 {vr(d,16)}, {vr(x,4)}, {vr(y,4)}, {c if isinstance(c,str) else vr(c,16)}")
ST=opt("st","0")=="1"
def stamp(real=False):
    if not ST: return
    a(f"{'s_memrealtime' if real else 's_memtime'} s[96:97]\ns_waitcnt lgkmcnt(0)\ns_mov_b32 m0, s99\ns_add_u32 s99, s99, 1\nv_writelane_b32 v{STV[0]}, s96, m0")
STV=[0]
def stamp_init(v):
    STV[0]=v
    if ST: a(f"s_mov_b32 s99, 0\nv_mov_b32 v{v}, 0"); stamp(True); stamp()
def stamp_out(k,vt,sw):
    if not ST: return
    stamp(); stamp(True)
    a(f"s_mov_b32 s92, s28\ns_mov_b32 s93, s29\ns_mov_b32 s94, 0x10000000\ns_mov_b32 s95, 0x20000")
    a(f"s_lshl_b32 s96, s2, 3\ns_add_u32 s96, s96, s{sw}\ns_lshl_b32 s96, s96, 8\ns_add_u32 s96, s96, {0x2000000+k*0x80000}")
    a(f"v_and_b32 v{vt}, 63, v0\nv_lshlrev_b32 v{vt}, 2, v{vt}\nbuffer_store_dword v{STV[0]}, v{vt}, s[92:95], s96 offen\ns_waitcnt vmcnt(0)")
K1=NAME+"_kernel"; K2=NAME+"_oproj_kernel"
a(open("cdna_kernels/"+NAME+".s.ref").read().split("; Override")[0].rstrip())
a(f"; @launch kernel={K1} grid=(256,1,1) block=(512,1,1) lds=163840")
a(f"; @launch kernel={K2} grid=(256,1,1) block=(512,1,1) lds=131072")
a('.amdgcn_target "amdgcn-amd-amdhsa--gfx950"\n.text')
def ptrs():
    a("s_load_dwordx16 s[4:19], s[0:1], 0\ns_load_dwordx8 s[20:27], s[0:1], 64\ns_load_dwordx2 s[28:29], s[0:1], 96")
class Cnt:
    def __init__(s,name,mx): s.q=[]; s.name=name; s.mx=mx; s.done=0
    def issue(s,tag): s.q.append(tag)
    def wait(s,tags):
        idx=[i for i,t in enumerate(s.q) if t in tags]
        if not idx or idx[-1]<s.done: return
        n=len(s.q)-1-idx[-1]
        if n>s.mx: n=s.mx
        s.done=len(s.q)-n
        a(f"s_waitcnt {s.name}({n})")
def kernel1():
    head(K1)
    a("s_cmp_ge_u32 s2, 256\ns_cbranch_scc1 L1_end")
    stamp_init(19)
    ptrs()
    SX,SK,SV,SW,SO=32,36,40,44,48
    sW,sHalf,sQb,sHead,sB,sBr=52,53,54,55,56,57
    sKV,sT,sT2,sC,sLw,sLw2,sJ0,sAny=58,59,60,64,65,66,67,78
    sEv,sOd,sLo,sHi=68,70,72,74
    sXo,sWo=76,77
    vL,vDK,vDV,vDW,vX,vK0,vV0,vW0=1,2,3,4,5,6,7,8
    vM,vLs,vLs2,vAl,vT0,vT1,vT2,vT3=9,10,11,12,13,14,15,16
    vVA=20; vKA=24
    vQ=32; vO=64; vS=128; vE=160; vP=192; vF=208
    vXF=128; vXT=192
    PD=int(opt("pd","6")); BAR=15-PD
    vm=Cnt("vmcnt",63); lg=Cnt("lgkmcnt",15)
    a(f"v_lshrrev_b32 v{vT0}, 6, v0\nv_and_b32 v{vL}, 63, v0\nv_readfirstlane_b32 s{sW}, v{vT0}")
    a(f"s_and_b32 s{sBr}, s2, 1\ns_lshr_b32 s{sT}, s2, 1\ns_and_b32 s{sT}, s{sT}, 3\ns_lshl_b32 s{sT}, s{sT}, 3")
    a(f"s_lshr_b32 s{sT2}, s2, 3\ns_and_b32 s{sT2}, s{sT2}, 7\ns_add_u32 s{sHead}, s{sT}, s{sT2}")
    a(f"s_lshr_b32 s{sHalf}, s{sW}, 2\ns_and_b32 s{sQb}, s{sW}, 3\ns_lshr_b32 s{sB}, s2, 6\ns_lshl_b32 s{sB}, s{sB}, 1")
    if opt("rot","1")=="1": a(f"s_add_u32 s{sJ0}, s{sB}, s{sT2}")
    else: a(f"s_mov_b32 s{sJ0}, 0")
    a(f"s_add_u32 s{sB}, s{sB}, s{sHalf}")
    a(f"v_lshrrev_b32 v{vT0}, 4, v{vL}\nv_and_b32 v{vT1}, 15, v{vL}\nv_lshlrev_b32 v{vT2}, 2, v{vT0}\nv_xor_b32 v{vT1}, v{vT1}, v{vT2}")
    a(f"v_lshlrev_b32 v{vT2}, 4, v{vT1}\nv_lshl_add_u32 v{vDW}, v{vT0}, 13, v{vT2}\nv_lshl_add_u32 v{vDV}, v{vT0}, 8, v{vT2}")
    a(f"v_xor_b32 v{vT1}, s{sQb}, v{vT1}\nv_lshlrev_b32 v{vT2}, 4, v{vT1}\nv_lshl_add_u32 v{vDK}, v{vT0}, 8, v{vT2}")
    a(f"v_bfe_u32 v{vT0}, v{vL}, 2, 3\nv_lshlrev_b32 v{vT0}, 12, v{vT0}\nv_lshrrev_b32 v{vT1}, 5, v{vL}\nv_lshlrev_b32 v{vT1}, 6, v{vT1}")
    a(f"v_and_b32 v{vT2}, 3, v{vL}\nv_lshlrev_b32 v{vT2}, 4, v{vT2}\nv_add3_u32 v{vX}, v{vT0}, v{vT1}, v{vT2}")
    a(f"s_lshl_b32 s{sXo}, s{sB}, 2\ns_add_u32 s{sXo}, s{sXo}, s{sQb}\ns_lshl_b32 s{sXo}, s{sXo}, 15")
    a(f"s_lshl_b32 s{sWo}, s{sW}, 16\ns_lshl_b32 s{sT}, s{sHead}, 8\ns_add_u32 s{sWo}, s{sWo}, s{sT}")
    a(f"s_lshl_b32 s{sKV}, s{sB}, 5\ns_add_u32 s{sKV}, s{sKV}, s{sHead}\ns_lshl_b32 s{sKV}, s{sKV}, 17\ns_lshl_b32 s{sT}, s{sQb}, 12\ns_add_u32 s{sKV}, s{sKV}, s{sT}")
    a(f"s_lshl_b32 s{sLw}, s{sW}, 12\ns_lshl_b32 s{sLw2}, s{sW}, 11")
    a("s_waitcnt lgkmcnt(0)")
    a(f"s_cmp_eq_u32 s{sBr}, 1")
    srd(SW,10,20,0 if opt('nowq','0')=='1' else 0x400000); srd(SX,4,14,0 if opt('nox','0')=='1' else 0x100000)
    ksz=0 if opt('nokv','0')=='1' else 0x2000000
    srd(80,12,22,0x400000); srd(SK,6,16,ksz); srd(SV,8,18,ksz); srd(SO,28,None,0x1000000)
    def ld_w(j):
        def f(n):
            if n==0: a(f"s_add_u32 s{sT2}, s{sJ0}, {j}\ns_and_b32 s{sT2}, s{sT2}, 7\ns_lshl_b32 s{sT2}, s{sT2}, 19\ns_add_u32 s{sT2}, s{sT2}, s{sWo}")
            a(f"s_add_u32 m0, s{sLw2}, {(j&3)*16384+n*1024}")
            a(f"s_add_u32 s{sT2}, s{sT2}, {n*32768}")
            a(f"buffer_load_dwordx4 v{vDW}, s[{SW}:{SW+3}], s{sT2} offen {WP} lds"); vm.issue(("W",j))
        return [lambda n=n:f(n) for n in range(2)]
    def ld_x(j):
        def f(i):
            if i==0: a(f"s_add_u32 s{sT2}, s{sJ0}, {j}\ns_and_b32 s{sT2}, s{sT2}, 7\ns_lshl_b32 s{sT2}, s{sT2}, 7\ns_add_u32 s{sT2}, s{sT2}, s{sXo}")
            a(f"buffer_load_dwordx4 {vr(vXF+16*(j&3)+4*i,4)}, v{vX}, s[{SX}:{SX+3}], s{sT2} offen offset:{i*1024} {XP}"); vm.issue(("X",j))
        return [lambda i=i:f(i) for i in range(4)]
    def pf_wo():
        a(f"s_lshr_b32 s{sT2}, s2, 1\ns_lshl_b32 s{sT2}, s{sT2}, 15\ns_add_u32 s{sT2}, s{sT2}, s{sLw}\nv_lshlrev_b32 v17, 6, v{vL}")
        a(f"buffer_load_dword v18, v17, s[80:83], s{sT2} offen"); vm.issue("pf")
    seq=[("K",0)]
    for t in range(7): seq+=[("K",t+1),("V",t)]
    seq+=[("V",7)]
    slot=lambda n:((n+2)%5)*32768
    def ld_kv(n,pieces=range(4)):
        ty,t=seq[n]
        def f(p,first):
            if first: a(f"s_add_u32 m0, s{sLw}, {slot(n)}\ns_add_u32 s{sT}, s{sKV}, {t*16384}")
            r,v=(SK,vDK) if ty=="K" else (SV,vDV)
            a(f"buffer_load_dwordx4 v{v}, s[{r}:{r+3}], s{sT} offen offset:{p*1024} {KVP} lds"); vm.issue(("KV",n))
        return [lambda p=p,i=i:f(p,i==0) for i,p in enumerate(pieces)]
    for j in range(3):
        for f in ld_w(j)+ld_x(j): f()
        if opt("pfw","-")=="p%d"%j: pf_wo()
    a(f"v_bfe_u32 v{vT0}, v{vL}, 2, 2\nv_lshrrev_b32 v{vT1}, 5, v{vL}\nv_bfe_u32 v{vT2}, v{vL}, 4, 1")
    a(f"v_mul_u32_u24 v{vT3}, 320, v{vT0}\nv_lshl_add_u32 v{vT3}, v{vT2}, 5, v{vT3}")
    a(f"v_lshl_add_u32 v{vVA}, v{vT1}, 13, v{vT3}\nv_and_b32 v{vT2}, 1, v{vL}\nv_lshl_add_u32 v{vVA}, v{vT2}, 4, v{vVA}\nv_bfe_u32 v{vT2}, v{vL}, 1, 1\nv_lshl_add_u32 v{vVA}, v{vT2}, 3, v{vVA}")
    for db in range(1,4): a(f"v_xor_b32 v{vVA+db}, {db*64}, v{vVA}")
    a(f"v_lshl_add_u32 v{vV0}, v{vT1}, 12, v{vT3}\nv_and_b32 v{vT2}, 3, v{vL}\nv_lshl_add_u32 v{vV0}, v{vT2}, 3, v{vV0}")
    a(f"s_lshl_b32 s{sT}, s{sHalf}, 14\nv_add_u32 v{vV0}, s{sT}, v{vV0}")
    a(f"v_lshlrev_b32 v{vK0}, 12, v{vT0}\nv_bfe_u32 v{vT3}, v{vL}, 4, 1\nv_lshl_add_u32 v{vK0}, v{vT3}, 10, v{vK0}\nv_lshl_add_u32 v{vK0}, v{vT2}, 8, v{vK0}")
    a(f"v_lshl_add_u32 v{vT3}, v{vT2}, 2, v{vT0}\nv_xor_b32 v{vT3}, v{vT3}, v{vT1}\nv_lshl_add_u32 v{vK0}, v{vT3}, 4, v{vK0}\nv_add_u32 v{vK0}, s{sT}, v{vK0}")
    for r,v in ((sEv,0x55555555),(sOd,0xaaaaaaaa),(sLo,0x33333333),(sHi,0xcccccccc)): a(f"s_mov_b32 s{r}, {v:#x}\ns_mov_b32 s{r+1}, {v:#x}")
    a(f"s_mov_b32 s{sC}, 0x3e0293ee")
    if opt("prio","0")=="1": a(f"s_cmp_eq_u32 s{sHalf}, 0\ns_cbranch_scc1 L1_noprio\ns_setprio 1\nL1_noprio:")
    def tr_ops(j):
        X=vXF+16*(j&3); r=[]
        for src,dst,bit,mk,mo,perm in ((X,vXT,1,sEv,sOd,"[1,0,3,2]"),(vXT,X,2,sLo,sHi,"[2,3,0,1]")):
            for m,want in ((mk,0),(mo,bit)):
                pre=f"s_mov_b64 vcc, s[{m}:{m+1}]\n"
                for i in range(4):
                    if (i&bit)!=want: continue
                    for d in range(4):
                        r.append(pre+f"v_cndmask_b32_dpp v{dst+4*i+d}, v{src+4*(i^bit)+d}, v{src+4*i+d}, vcc quad_perm:{perm} row_mask:0xf bank_mask:0xf"); pre=""
        return r
    segs=[("W",j) for j in range(8)]+[("KV",n) for n in range(16)]
    abase={"K":None,"V":None}
    def set_addr(sg):
        if sg[0]=="W": return []
        ty,t=seq[sg[1]]; b=slot(sg[1])&~0xffff
        if abase[ty]==b: return []
        abase[ty]=b
        if ty=="K": return [f"v_add_u32 v{vKA}, {b}, v{vK0}"]+[f"v_xor_b32 v{vKA+s}, {s<<5}, v{vKA}" for s in range(1,8)]
        return [f"v_add_u32 v{vVA}, {b}, v{vV0}"]+[f"v_xor_b32 v{vVA+d}, {d*64}, v{vVA}" for d in range(1,4)]
    def rd(sg,i):
        F=vF+4*(i&7)
        if sg[0]=="W":
            js,db=i>>2,i&3
            for r in range(2): a(f"ds_read_b64_tr_b16 {vr(F+2*r,2)}, v{vVA+db} offset:{(sg[1]&3)*16384+(8*js+4*r)*256}"); lg.issue((sg,i))
            return
        ty,t=seq[sg[1]]; off=slot(sg[1])&0xffff
        if ty=="K": a(f"ds_read_b128 {vr(F,4)}, v{vKA+(i&7)} offset:{off+(i>>3)*2048}"); lg.issue((sg,i))
        else:
            ks,db=i>>2,i&3
            for r in range(2): a(f"ds_read_b64_tr_b16 {vr(F+2*r,2)}, v{vVA+db} offset:{off+(32*r+4*ks)*256}"); lg.issue((sg,i))
    def mm(sg,i):
        F=vF+4*(i&7)
        if sg[0]=="W": mfma(vO+16*(i&3),F,vXF+16*(sg[1]&3)+4*(i>>2),"0" if sg[1]==0 and i<4 else vO+16*(i&3)); return
        ty,t=seq[sg[1]]
        if ty=="K": mfma(vS+16*(i>>3),F,vQ+4*(i&7),"0" if (i&7)==0 else vS+16*(i>>3))
        else: mfma(vO+16*(i&3),F,vP+4*(i>>2),"0" if t==0 and i<4 else vO+16*(i&3))
    def max_ops(first):
        r=[f"v_max3_f32 v{vT0}, v{vS}, v{vS+1}, v{vS+2}"]+[f"v_max3_f32 v{vT0}, v{vS+i}, v{vS+i+1}, v{vT0}" for i in range(3,15,2)]
        r+=[f"v_max3_f32 v{vT1}, v{vS+16}, v{vS+17}, v{vS+15}"]+[f"v_max3_f32 v{vT1}, v{vS+i}, v{vS+i+1}, v{vT1}" for i in range(18,32,2)]
        r+=[f"v_max_f32 v{vT0}, v{vT0}, v{vT1}",f"v_mul_f32 v{vT0}, s{sC}, v{vT0}",f"v_mov_b32 v{vT1}, v{vT0}"]
        if first: r+=[f"s_nop 1\nv_permlane32_swap_b32 v{vT0}, v{vT1}",f"s_nop 0\nv_max_f32 v{vM}, v{vT0}, v{vT1}"]
        else:
            r+=[f"v_add_f32 v{vT2}, 0x41000000, v{vM}",f"s_nop 0\nv_permlane32_swap_b32 v{vT0}, v{vT1}",f"s_nop 0\nv_max_f32 v{vT0}, v{vT0}, v{vT1}"]
            r+=[f"v_cmp_gt_f32 vcc, v{vT0}, v{vT2}",f"s_nop 1\nv_cndmask_b32 v{vT0}, v{vM}, v{vT0}, vcc",f"v_sub_f32 v{vAl}, v{vM}, v{vT0}",f"v_mov_b32 v{vM}, v{vT0}"]
        r+=[f"v_fma_f32 v{vE+i}, v{vS+i}, s{sC}, -v{vM}" for i in range(32)]
        return r
    NE=int(opt("ne","8"))
    def exp_ops(first,lo,hi):
        r=[f"v_exp_f32 v{vE+i}, v{vE+i}" for i in range(lo,hi)]
        return r
    def fin_ops(first):
        r=[]; pend=list(range(0,NE,2))
        def fin(i):
            if first and i==0: r.extend([f"v_mov_b32 v{vLs}, v{vE}",f"v_mov_b32 v{vLs2}, v{vE+1}"])
            else: r.extend([f"v_add_f32 v{vLs}, v{vLs}, v{vE+i}",f"v_add_f32 v{vLs2}, v{vLs2}, v{vE+i+1}"])
            r.append(f"v_cvt_pk_bf16_f32 v{vP+i//2}, v{vE+i}, v{vE+i+1}")
        for i in range(NE,32,2):
            r.extend(exp_ops(first,i,i+2))
            if pend: fin(pend.pop(0))
            pend.append(i)
        if len(pend)==1: r.append("s_nop 0")
        for i in pend: fin(i)
        return r
    cost=lambda s: 2 if s.startswith("v_exp") else 1
    vm.wait([("W",0),("X",0)]); a("s_barrier"); stamp()
    for i in range(PD): rd(segs[0],i)
    for s_ in tr_ops(0): a(s_)
    for si,sg in enumerate(segs):
        nxt=segs[si+1] if si+1<len(segs) else None
        fill=[]; loads=[]; start=0; ty=None
        if sg[0]=="W":
            j=sg[1]
            if j<7: vm.wait([("X",j+1)]); fill=tr_ops(j+1)
            if j+3<8: loads=ld_w(j+3)+ld_x(j+3)
            loads+=ld_kv(j>>1,[2*(j&1),2*(j&1)+1])
            if str(j)==opt("pfw","-"): loads.append(pf_wo)
        else:
            n=sg[1]; ty,t=seq[n]
            if n+4<16: loads=ld_kv(n+4)
            if n==0:
                a("s_nop 7\ns_nop 3")
                for i in range(32): a(f"v_cvt_pk_bf16_f32 v{vQ+i}, v{vO+2*i}, v{vO+2*i+1}")
                a("s_nop 0")
            elif ty=="K": fill=fin_ops(t==1)
            elif t<7-1+1 and n<15 and t<7:
                if n<=14 and t<=6: fill=max_ops(False)+exp_ops(False,0,NE); start=1
            if n==15:
                fill=[]
                for s_ in fin_ops(False): a(s_)
                a("s_nop 0")
        tot=sum(cost(x) for x in fill); acc=0; last=14 if ty=="K" or sg[0]=="W" else 15
        for i in range(16):
            lg.wait([(sg,i)]); mm(sg,i)
            if i+PD<16: rd(sg,i+PD)
            elif nxt: rd(nxt,i+PD-16)
            if i==BAR and nxt:
                for s_ in set_addr(nxt): a(s_)
                vm.wait([nxt]); a("s_barrier")
            if i>=BAR and loads:
                k=-(-len(loads)//(16-i))
                for _ in range(k): loads.pop(0)()
            while fill and i>=start and acc<tot*(i+1-start)/(last+1-start):
                x=fill.pop(0); acc+=cost(x); a(x)
        assert not fill and not loads
        if sg==("KV",0):
            a("s_nop 5")
            for s_ in max_ops(True)+exp_ops(True,0,NE): a(s_)
        if ty=="V" and t<7:
            a(f"s_cbranch_vccz L1_nr{t}\nv_exp_f32 v{vAl}, v{vAl}\ns_nop 7\ns_nop 3")
            a(f"v_mul_f32 v{vLs}, v{vAl}, v{vLs}\nv_mul_f32 v{vLs2}, v{vAl}, v{vLs2}")
            for i in range(64): a(f"v_mul_f32 v{vO+i}, v{vAl}, v{vO+i}")
            a(f"L1_nr{t}:")
        if ST: lg.done=len(lg.q); stamp()
    a(f"v_add_f32 v{vLs}, v{vLs}, v{vLs2}\nv_lshlrev_b32 v{vT3}, 4, v{vL}\nv_mov_b32 v{vT1}, v{vLs}\ns_nop 1\nv_permlane32_swap_b32 v{vLs}, v{vT1}\ns_nop 1\nv_add_f32 v{vLs}, v{vLs}, v{vT1}\nv_rcp_f32 v{vT0}, v{vLs}")
    a(f"s_lshl_b32 s{sT}, s{sBr}, 3\ns_add_u32 s{sT}, s{sT}, s{sB}\ns_lshl_b32 s{sT}, s{sT}, 2\ns_add_u32 s{sT}, s{sT}, s{sQb}\ns_lshl_b32 s{sT}, s{sT}, 5\ns_add_u32 s{sT}, s{sT}, s{sHead}\ns_lshl_b32 s{sT}, s{sT}, 13\ns_add_u32 s{sT2}, s{sT}, 4096")
    for f in range(8):
        for i in range(8): a(f"v_mul_f32 v{vO+8*f+i}, v{vT0}, v{vO+8*f+i}")
        for i in range(4): a(f"v_cvt_pk_bf16_f32 v{vS+4*f+i}, v{vO+8*f+2*i}, v{vO+8*f+2*i+1}")
        a(f"buffer_store_dwordx4 {vr(vS+4*f,4)}, v{vT3}, s[{SO}:{SO+3}], s{sT if f<4 else sT2} offen offset:{(f&3)*1024} {OSP}")
    stamp(); a("s_waitcnt vmcnt(0)"); stamp_out(0,vT0,sW)
    a("L1_end:\ns_endpgm")
def kernel2():
    head(K2)
    a("s_cmp_ge_u32 s2, 256\ns_cbranch_scc1 L2_end")
    stamp_init(10)
    ptrs()
    SW,SO,SD=32,36,40
    sW,sBr,sRt,sCt,sT,sT2,sO0,sO1,sWo,sLw=52,53,54,55,56,57,58,59,60,61
    vL,vOA,vDW,vA0,vA1,vT0,vT1,vT2,vT3=1,2,3,4,5,6,7,8,9
    vAcc=12; vWF=76; vOF=92; D=int(opt("d","8")); BAR2=opt("bar","0")=="1"; ORD=opt("ord","0")
    sTb,sWb,sOb0,sOb1=62,64,65,66
    def order(g):
        if ORD=="0": return list(range(16))
        if ORD=="2": return [(i&8)|((i+2*g)&7) for i in range(16)]
        if ORD=="3": return [(i&12)|((i+g)&3) for i in range(16)]
        lead={0:g}; lead.update({1+g+4*k:4+g+4*k for k in range(3)}); rest=[b for b in range(16) if b%4!=g]
        if ORD=="4": rest[0:3]=[(g+k)&3 for k in (1,2,3)]
        return [lead[i] if i in lead else rest.pop(0) for i in range(16)]
    a(f"v_lshrrev_b32 v{vT0}, 6, v0\nv_and_b32 v{vL}, 63, v0\nv_readfirstlane_b32 s{sW}, v{vT0}")
    a(f"s_and_b32 s{sBr}, s2, 1\ns_lshr_b32 s{sT}, s2, 1\ns_and_b32 s{sT}, s{sT}, 3\ns_lshl_b32 s{sT}, s{sT}, 2\ns_lshr_b32 s{sT2}, s2, 3\ns_and_b32 s{sT2}, s{sT2}, 3\ns_add_u32 s{sRt}, s{sT}, s{sT2}\ns_lshr_b32 s{sCt}, s2, 5")
    a(f"v_lshlrev_b32 v{vOA}, 4, v{vL}")
    a(f"v_lshrrev_b32 v{vT0}, 3, v{vL}\nv_and_b32 v{vT1}, 7, v{vL}\nv_bfe_u32 v{vT2}, v{vL}, 4, 1\nv_lshlrev_b32 v{vT2}, 2, v{vT2}\nv_xor_b32 v{vT1}, v{vT1}, v{vT2}\nv_lshlrev_b32 v{vT1}, 4, v{vT1}\nv_lshl_add_u32 v{vDW}, v{vT0}, 10, v{vT1}")
    a("s_waitcnt lgkmcnt(0)")
    a(f"s_cmp_eq_u32 s{sBr}, 1")
    srd(SW,12,22,0 if opt('nowo','0')=='1' else 0x400000); srd(SO,28,None,0 if opt('noo','0')=='1' else 0x1000000); srd(SD,24,None,0x200000)
    a(f"s_lshl_b32 s{sO0}, s{sBr}, 4\ns_add_u32 s{sO0}, s{sO0}, s{sRt}\ns_lshl_b32 s{sO0}, s{sO0}, 19\ns_lshl_b32 s{sT}, s{sW}, 15\ns_add_u32 s{sO0}, s{sO0}, s{sT}\ns_add_u32 s{sO1}, s{sO0}, 0x40000")
    a(f"s_lshl_b32 s{sWo}, s{sW}, 19\ns_lshl_b32 s{sT}, s{sCt}, 7\ns_add_u32 s{sWo}, s{sWo}, s{sT}\ns_lshl_b32 s{sLw}, s{sW}, 14")
    a(f"s_add_u32 s{sT}, s{sRt}, s{sCt}\ns_and_b32 s{sT}, s{sT}, 3")
    for g in range(4):
        t=sum(b<<(4*i) for i,b in enumerate(order(g))); assert sorted(order(g))==list(range(16))
        if g==0: a(f"s_mov_b32 s{sTb}, {t&0xffffffff:#x}\ns_mov_b32 s{sTb+1}, {t>>32:#x}")
        else: a(f"s_cmp_eq_u32 s{sT}, {g}\ns_cmov_b32 s{sTb}, {t&0xffffffff:#x}\ns_cmov_b32 s{sTb+1}, {t>>32:#x}")
    def load(s):
        sl=s%D
        if s%2==0:
            a(f"s_bfe_u32 s{sT}, s{sTb+(s>>4)}, {0x40000+4*((s>>1)&7):#x}\ns_lshl_b32 s{sWb}, s{sT}, 15\ns_add_u32 s{sWb}, s{sWb}, s{sWo}")
            a(f"s_lshl_b32 s{sT}, s{sT}, 11\ns_add_u32 s{sOb0}, s{sO0}, s{sT}\ns_add_u32 s{sOb1}, s{sO1}, s{sT}")
            if BAR2 and s: a("s_barrier")
        for n in range(2):
            a(f"s_add_u32 m0, s{sLw}, {sl*2048+n*1024}\ns_add_u32 s{sT}, s{sWb}, {(16*(s&1)+8*n)*1024}")
            a(f"buffer_load_dwordx4 v{vDW}, s[{SW}:{SW+3}], s{sT} offen {WOP} lds")
        for rb in range(2): a(f"buffer_load_dwordx4 {vr(vOF+8*sl+4*rb,4)}, v{vOA}, s[{SO}:{SO+3}], s{sOb1 if rb else sOb0} offen offset:{(s&1)*1024} {OLP}")
    for s in range(D): load(s)
    a(f"v_bfe_u32 v{vT0}, v{vL}, 2, 2\nv_lshrrev_b32 v{vT1}, 5, v{vL}\nv_lshl_add_u32 v{vT1}, v{vT1}, 2, v{vT0}\nv_lshlrev_b32 v{vA0}, 7, v{vT1}")
    a(f"v_lshrrev_b32 v{vT0}, 1, v{vT0}\nv_lshl_add_u32 v{vA0}, v{vT0}, 6, v{vA0}\nv_and_b32 v{vT0}, 1, v{vL}\nv_lshl_add_u32 v{vA0}, v{vT0}, 5, v{vA0}")
    a(f"v_bfe_u32 v{vT0}, v{vL}, 4, 1\nv_lshl_add_u32 v{vA0}, v{vT0}, 4, v{vA0}\nv_bfe_u32 v{vT0}, v{vL}, 1, 1\nv_lshl_add_u32 v{vA0}, v{vT0}, 3, v{vA0}")
    a(f"v_add_u32 v{vA0}, s{sLw}, v{vA0}\nv_xor_b32 v{vA1}, 64, v{vA0}")
    def wread(s):
        for nb in range(2):
            for rd in range(2): a(f"ds_read_b64_tr_b16 {vr(vWF+(s&1)*8+nb*4+rd*2,2)}, v{vA1 if nb else vA0} offset:{(s%D)*2048+rd*1024}")
    NS=32
    a(f"s_waitcnt vmcnt({4*(D-1)})"); wread(0)
    for s in range(NS):
        if s+1<NS:
            a(f"s_waitcnt vmcnt({4*(min(NS,s+D)-(s+2))})"); wread(s+1); a("s_waitcnt lgkmcnt(4)")
        else: a("s_waitcnt lgkmcnt(0)")
        for nb in range(2):
            for rb in range(2): mfma(vAcc+16*(2*nb+rb), vWF+(s&1)*8+nb*4, vOF+8*(s%D)+4*rb, "0" if s==0 else vAcc+16*(2*nb+rb))
        if s%2==0: stamp()
        if s+D<NS: load(s+D)
    a(f"v_add_u32 v{vT0}, s{sLw}, v{vOA}\ns_lshl_b32 s{sT}, s{sW}, 11\nv_add_u32 v{vT1}, s{sT}, v{vOA}\nv_add_u32 v{vT2}, 0x10000, v{vT1}\ns_nop 7")
    for p in range(16): a(f"ds_write_b128 v{vT0}, {vr(vAcc+4*p,4)} offset:{p*1024}")
    a("s_waitcnt lgkmcnt(0)"); stamp(); a("s_barrier"); stamp()
    for w in range(8):
        for p in range(2): a(f"ds_read_b128 {vr(vAcc+8*w+4*p,4)}, v{vT1 if w<4 else vT2} offset:{(w&3)*16384+p*1024}")
    a(f"v_and_b32 v{vT0}, 31, v{vL}\nv_lshlrev_b32 v{vT0}, 11, v{vT0}\nv_lshrrev_b32 v{vT3}, 5, v{vL}\nv_lshl_add_u32 v{vT0}, v{vT3}, 5, v{vT0}")
    a(f"s_lshl_b32 s{sT}, s{sRt}, 1\ns_bfe_u32 s{sT2}, s{sW}, 0x10001\ns_add_u32 s{sT}, s{sT}, s{sT2}\ns_lshl_b32 s{sT}, s{sT}, 16")
    a(f"s_lshl_b32 s{sT2}, s{sBr}, 10\ns_add_u32 s{sT}, s{sT}, s{sT2}\ns_lshl_b32 s{sT2}, s{sCt}, 7\ns_add_u32 s{sT}, s{sT}, s{sT2}")
    a(f"s_lshr_b32 s{sT2}, s{sW}, 2\ns_lshl_b32 s{sT2}, s{sT2}, 6\ns_add_u32 s{sT}, s{sT}, s{sT2}\ns_and_b32 s{sT2}, s{sW}, 1\ns_lshl_b32 s{sT2}, s{sT2}, 4\ns_add_u32 s{sT}, s{sT}, s{sT2}")
    for w in range(1,8):
        a(f"s_waitcnt lgkmcnt({14-2*w})")
        for i in range(8): a(f"v_add_f32 v{vAcc+i}, v{vAcc+i}, v{vAcc+8*w+i}")
    for i in range(4): a(f"v_cvt_pk_bf16_f32 v{vWF+i}, v{vAcc+2*i}, v{vAcc+2*i+1}")
    a(f"buffer_store_dwordx4 {vr(vWF,4)}, v{vT0}, s[{SD}:{SD+3}], s{sT} offen {OUTP}")
    a("s_waitcnt vmcnt(0)"); stamp_out(1,vT0,sW)
    a("s_waitcnt vmcnt(0)\nL2_end:\ns_endpgm")
kernel1(); kernel2()
a('.section .rodata,"a"\n.p2align 6'); a(desc(K1,256)); a(".p2align 6"); a(desc(K2,160))
print("\n".join(o))
```

```python
import sys, os
NAME="concat_heads__mha_block_cached__gqa_block_cached__near_ridge"
OPT=dict(a.split("=") for a in sys.argv[1:] if "=" in a)
def opt(k,d): return OPT.get(k,d)
KVP=opt("kv","nt"); WP=opt("w",""); XP=opt("x",""); OSP=opt("os",""); OLP=opt("ol",""); WOP=opt("wo",""); OUTP=opt("out","")
o=[]
def a(s): o.append(s)
def vr(b,n): return f"v[{b}:{b+n-1}]"
def desc(name,vg):
    return f'''.amdhsa_kernel {name}
  .amdhsa_next_free_vgpr {vg}
  .amdhsa_next_free_sgpr 102
  .amdhsa_accum_offset {vg}
  .amdhsa_group_segment_fixed_size 0
  .amdhsa_kernarg_size 104
  .amdhsa_user_sgpr_count 2
  .amdhsa_user_sgpr_kernarg_segment_ptr 1
  .amdhsa_system_sgpr_workgroup_id_x 1
.end_amdhsa_kernel'''
def head(name): a(f".globl {name}\n.p2align 8\n.type {name},@function\n{name}:")
def srd(d,a_lo,b_lo,size):
    if b_lo is None: a(f"s_mov_b32 s{d}, s{a_lo}\ns_mov_b32 s{d+1}, s{a_lo+1}")
    else: a(f"s_cselect_b32 s{d}, s{b_lo}, s{a_lo}\ns_cselect_b32 s{d+1}, s{b_lo+1}, s{a_lo+1}")
    a(f"s_mov_b32 s{d+2}, {size:#x}\ns_mov_b32 s{d+3}, 0x00020000")
def mfma(d,x,y,c): a(f"v_mfma_f32_32x32x16_bf16 {vr(d,16)}, {vr(x,4)}, {vr(y,4)}, {c if isinstance(c,str) else vr(c,16)}")
ST=opt("st","0")=="1"
def stamp(real=False):
    if not ST: return
    a(f"{'s_memrealtime' if real else 's_memtime'} s[96:97]\ns_waitcnt lgkmcnt(0)\ns_mov_b32 m0, s99\ns_add_u32 s99, s99, 1\nv_writelane_b32 v{STV[0]}, s96, m0")
STV=[0]
def stamp_init(v):
    STV[0]=v
    if ST: a(f"s_mov_b32 s99, 0\nv_mov_b32 v{v}, 0"); stamp(True); stamp()
def stamp_out(k,vt,sw):
    if not ST: return
    stamp(); stamp(True)
    a(f"s_mov_b32 s92, s28\ns_mov_b32 s93, s29\ns_mov_b32 s94, 0x10000000\ns_mov_b32 s95, 0x20000")
    a(f"s_lshl_b32 s96, s2, 3\ns_add_u32 s96, s96, s{sw}\ns_lshl_b32 s96, s96, 8\ns_add_u32 s96, s96, {0x2000000+k*0x80000}")
    a(f"v_and_b32 v{vt}, 63, v0\nv_lshlrev_b32 v{vt}, 2, v{vt}\nbuffer_store_dword v{STV[0]}, v{vt}, s[92:95], s96 offen\ns_waitcnt vmcnt(0)")
K1=NAME+"_kernel"; K2=NAME+"_oproj_kernel"
a(open("cdna_kernels/"+NAME+".s.ref").read().split("; Override")[0].rstrip())
a(f"; @launch kernel={K1} grid=(256,1,1) block=(512,1,1) lds=163840")
a(f"; @launch kernel={K2} grid=(256,1,1) block=(512,1,1) lds=131072")
a('.amdgcn_target "amdgcn-amd-amdhsa--gfx950"\n.text')
def ptrs():
    if opt("bad","0")=="1": a("s_and_b32 s3, s2, 7\ns_lshl_b32 s3, s3, 5\ns_lshr_b32 s2, s2, 3\ns_or_b32 s2, s2, s3")
    a("s_load_dwordx16 s[4:19], s[0:1], 0\ns_load_dwordx8 s[20:27], s[0:1], 64\ns_load_dwordx2 s[28:29], s[0:1], 96")
class Cnt:
    def __init__(s,name,mx): s.q=[]; s.name=name; s.mx=mx; s.done=0
    def issue(s,tag): s.q.append(tag)
    def wait(s,tags):
        idx=[i for i,t in enumerate(s.q) if t in tags]
        if not idx or idx[-1]<s.done: return
        n=len(s.q)-1-idx[-1]
        if n>s.mx: n=s.mx
        s.done=len(s.q)-n
        a(f"s_waitcnt {s.name}({n})")
def kernel1():
    head(K1)
    a("s_cmp_ge_u32 s2, 256\ns_cbranch_scc1 L1_end")
    stamp_init(19)
    ptrs()
    SX,SK,SV,SW,SO=32,36,40,44,48
    sW,sHalf,sQb,sHead,sB,sBr=52,53,54,55,56,57
    sKV,sT,sT2,sC,sLw,sLw2,sJ0,sAny=58,59,60,64,65,66,67,78
    sEv,sOd,sLo,sHi=68,70,72,74
    sXo,sWo=76,77
    vL,vDK,vDV,vDW,vX,vK0,vV0,vW0=1,2,3,4,5,6,7,8
    vM,vLs,vLs2,vAl,vT0,vT1,vT2,vT3=9,10,11,12,13,14,15,16
    vVA=20; vKA=24
    vQ=32; vO=64; vS=128; vE=160; vP=192; vF=208
    vXF=128; vXT=192
    PD=int(opt("pd","6")); BAR=15-PD
    vm=Cnt("vmcnt",63); lg=Cnt("lgkmcnt",15)
    a(f"v_lshrrev_b32 v{vT0}, 6, v0\nv_and_b32 v{vL}, 63, v0\nv_readfirstlane_b32 s{sW}, v{vT0}")
    a(f"s_and_b32 s{sBr}, s2, 1\ns_lshr_b32 s{sT}, s2, 1\ns_and_b32 s{sT}, s{sT}, 3\ns_lshl_b32 s{sT}, s{sT}, 3")
    a(f"s_lshr_b32 s{sT2}, s2, 3\ns_and_b32 s{sT2}, s{sT2}, 7\ns_add_u32 s{sHead}, s{sT}, s{sT2}")
    a(f"s_lshr_b32 s{sHalf}, s{sW}, 2\ns_and_b32 s{sQb}, s{sW}, 3\ns_lshr_b32 s{sB}, s2, 6\ns_lshl_b32 s{sB}, s{sB}, 1")
    ROT=opt("rot","0")
    def order(g):
        if ROT=="0": return list(range(8))
        if ROT=="2": return [g,4+g]+[x for k in (1,2,3) for x in ((g+k)&3,4+((g+k)&3))]
        if ROT=="3": return [(g+k)&3 for k in range(4)]+[4+((g+k)&3) for k in range(4)]
        lead={0:g,1+g:4+g}; rest=[(g+k)&3 for k in (1,2,3)]+[b for b in range(4,8) if b!=4+g]
        return [lead[i] if i in lead else rest.pop(0) for i in range(8)]
    a(f"s_lshr_b32 s{sT}, s2, 6\ns_add_u32 s{sT}, s{sT}, s{sT2}\ns_and_b32 s{sT}, s{sT}, 3")
    for g in range(4):
        t=sum(b<<(4*i) for i,b in enumerate(order(g))); assert sorted(order(g))==list(range(8))
        a(f"s_mov_b32 s{sJ0}, {t:#x}" if g==0 else f"s_cmp_eq_u32 s{sT}, {g}\ns_cmov_b32 s{sJ0}, {t:#x}")
    a(f"s_add_u32 s{sB}, s{sB}, s{sHalf}")
    a(f"v_lshrrev_b32 v{vT0}, 4, v{vL}\nv_and_b32 v{vT1}, 15, v{vL}\nv_lshlrev_b32 v{vT2}, 2, v{vT0}\nv_xor_b32 v{vT1}, v{vT1}, v{vT2}")
    a(f"v_lshlrev_b32 v{vT2}, 4, v{vT1}\nv_lshl_add_u32 v{vDW}, v{vT0}, 13, v{vT2}\nv_lshl_add_u32 v{vDV}, v{vT0}, 8, v{vT2}")
    a(f"v_xor_b32 v{vT1}, s{sQb}, v{vT1}\nv_lshlrev_b32 v{vT2}, 4, v{vT1}\nv_lshl_add_u32 v{vDK}, v{vT0}, 8, v{vT2}")
    a(f"v_bfe_u32 v{vT0}, v{vL}, 2, 3\nv_lshlrev_b32 v{vT0}, 12, v{vT0}\nv_lshrrev_b32 v{vT1}, 5, v{vL}\nv_lshlrev_b32 v{vT1}, 6, v{vT1}")
    a(f"v_and_b32 v{vT2}, 3, v{vL}\nv_lshlrev_b32 v{vT2}, 4, v{vT2}\nv_add3_u32 v{vX}, v{vT0}, v{vT1}, v{vT2}")
    a(f"s_lshl_b32 s{sXo}, s{sB}, 2\ns_add_u32 s{sXo}, s{sXo}, s{sQb}\ns_lshl_b32 s{sXo}, s{sXo}, 15")
    a(f"s_lshl_b32 s{sWo}, s{sW}, 16\ns_lshl_b32 s{sT}, s{sHead}, 8\ns_add_u32 s{sWo}, s{sWo}, s{sT}")
    a(f"s_lshl_b32 s{sKV}, s{sB}, 5\ns_add_u32 s{sKV}, s{sKV}, s{sHead}\ns_lshl_b32 s{sKV}, s{sKV}, 17\ns_lshl_b32 s{sT}, s{sQb}, 12\ns_add_u32 s{sKV}, s{sKV}, s{sT}")
    a(f"s_lshl_b32 s{sLw}, s{sW}, 12\ns_lshl_b32 s{sLw2}, s{sW}, 11")
    a("s_waitcnt lgkmcnt(0)")
    a(f"s_cmp_eq_u32 s{sBr}, 1")
    srd(SW,10,20,0 if opt('nowq','0')=='1' else 0x400000); srd(SX,4,14,0 if opt('nox','0')=='1' else 0x100000)
    ksz=0 if opt('nokv','0')=='1' else 0x2000000
    srd(80,12,22,0x400000); srd(SK,6,16,ksz); srd(SV,8,18,ksz); srd(SO,28,None,0x1000000)
    def ld_w(j):
        def f(n):
            if n==0: a(f"s_bfe_u32 s{sT2}, s{sJ0}, {0x40000+4*j:#x}\ns_lshl_b32 s{sT2}, s{sT2}, 19\ns_add_u32 s{sT2}, s{sT2}, s{sWo}")
            a(f"s_add_u32 m0, s{sLw2}, {(j&3)*16384+n*1024}")
            a(f"s_add_u32 s{sT2}, s{sT2}, {n*32768}")
            a(f"buffer_load_dwordx4 v{vDW}, s[{SW}:{SW+3}], s{sT2} offen {WP} lds"); vm.issue(("W",j))
        return [lambda n=n:f(n) for n in range(2)]
    def ld_x(j):
        def f(i):
            if i==0: a(f"s_bfe_u32 s{sT2}, s{sJ0}, {0x40000+4*j:#x}\ns_lshl_b32 s{sT2}, s{sT2}, 7\ns_add_u32 s{sT2}, s{sT2}, s{sXo}")
            a(f"buffer_load_dwordx4 {vr(vXF+16*(j&3)+4*i,4)}, v{vX}, s[{SX}:{SX+3}], s{sT2} offen offset:{i*1024} {XP}"); vm.issue(("X",j))
        return [lambda i=i:f(i) for i in range(4)]
    def pf_wo():
        a(f"s_lshr_b32 s{sT2}, s2, 1\ns_lshl_b32 s{sT2}, s{sT2}, 15\ns_add_u32 s{sT2}, s{sT2}, s{sLw}\nv_lshlrev_b32 v17, 6, v{vL}")
        a(f"buffer_load_dword v18, v17, s[80:83], s{sT2} offen"); vm.issue("pf")
    seq=[("K",0)]
    for t in range(7): seq+=[("K",t+1),("V",t)]
    seq+=[("V",7)]
    slot=lambda n:((n+2)%5)*32768
    def ld_kv(n,pieces=range(4)):
        ty,t=seq[n]
        def f(p,first):
            if first: a(f"s_add_u32 m0, s{sLw}, {slot(n)}\ns_add_u32 s{sT}, s{sKV}, {t*16384}")
            r,v=(SK,vDK) if ty=="K" else (SV,vDV)
            a(f"buffer_load_dwordx4 v{v}, s[{r}:{r+3}], s{sT} offen offset:{p*1024} {KVP} lds"); vm.issue(("KV",n))
        return [lambda p=p,i=i:f(p,i==0) for i,p in enumerate(pieces)]
    KS=[int(c) for c in opt("ks","00022222222")]; REG=sum(KS)==20; kq=[(n,p) for n in ([0,1,2,15,3] if REG else [0,1,2,3]) for p in range(4)]
    assert sum(KS)==len(kq) and sum(KS[:9])<=len(kq)-4
    def ld_reg(p):
        a(f"s_add_u32 s{sT}, s{sKV}, {7*16384}\nbuffer_load_dwordx4 {vr(240+4*p,4)}, v{vDV}, s[{SV}:{SV+3}], s{sT} offen offset:{p*1024} {KVP}"); vm.issue("R")
    def st_reg(p):
        if p==0: a(f"v_lshlrev_b32 v17, 4, v{vL}\ns_add_u32 s{sT}, s{sLw}, {slot(15)}\nv_add_u32 v17, s{sT}, v17"); vm.wait(["R"])
        a(f"ds_write_b128 v17, {vr(240+4*p,4)} offset:{p*1024}"); lg.issue("R")
    def kv_early(pos):
        r=[]
        for _ in range(KS[pos]):
            n,p=kq.pop(0); r+=[lambda p=p:ld_reg(p)] if n==15 else ld_kv(n,[p])
        return r
    for j in range(3):
        for f in ld_w(j)+ld_x(j)+kv_early(j): f()
        if opt("pfw","-")=="p%d"%j: pf_wo()
    a(f"v_bfe_u32 v{vT0}, v{vL}, 2, 2\nv_lshrrev_b32 v{vT1}, 5, v{vL}\nv_bfe_u32 v{vT2}, v{vL}, 4, 1")
    a(f"v_mul_u32_u24 v{vT3}, 320, v{vT0}\nv_lshl_add_u32 v{vT3}, v{vT2}, 5, v{vT3}")
    a(f"v_lshl_add_u32 v{vVA}, v{vT1}, 13, v{vT3}\nv_and_b32 v{vT2}, 1, v{vL}\nv_lshl_add_u32 v{vVA}, v{vT2}, 4, v{vVA}\nv_bfe_u32 v{vT2}, v{vL}, 1, 1\nv_lshl_add_u32 v{vVA}, v{vT2}, 3, v{vVA}")
    for db in range(1,4): a(f"v_xor_b32 v{vVA+db}, {db*64}, v{vVA}")
    a(f"v_lshl_add_u32 v{vV0}, v{vT1}, 12, v{vT3}\nv_and_b32 v{vT2}, 3, v{vL}\nv_lshl_add_u32 v{vV0}, v{vT2}, 3, v{vV0}")
    a(f"s_lshl_b32 s{sT}, s{sHalf}, 14\nv_add_u32 v{vV0}, s{sT}, v{vV0}")
    a(f"v_lshlrev_b32 v{vK0}, 12, v{vT0}\nv_bfe_u32 v{vT3}, v{vL}, 4, 1\nv_lshl_add_u32 v{vK0}, v{vT3}, 10, v{vK0}\nv_lshl_add_u32 v{vK0}, v{vT2}, 8, v{vK0}")
    a(f"v_lshl_add_u32 v{vT3}, v{vT2}, 2, v{vT0}\nv_xor_b32 v{vT3}, v{vT3}, v{vT1}\nv_lshl_add_u32 v{vK0}, v{vT3}, 4, v{vK0}\nv_add_u32 v{vK0}, s{sT}, v{vK0}")
    for r,v in ((sEv,0x55555555),(sOd,0xaaaaaaaa),(sLo,0x33333333),(sHi,0xcccccccc)): a(f"s_mov_b32 s{r}, {v:#x}\ns_mov_b32 s{r+1}, {v:#x}")
    a(f"s_mov_b32 s{sC}, 0x3e0293ee")
    if opt("prio","0")=="1": a(f"s_cmp_eq_u32 s{sHalf}, 0\ns_cbranch_scc1 L1_noprio\ns_setprio 1\nL1_noprio:")
    def tr_ops(j):
        X=vXF+16*(j&3); r=[]
        for src,dst,bit,mk,mo,perm in ((X,vXT,1,sEv,sOd,"[1,0,3,2]"),(vXT,X,2,sLo,sHi,"[2,3,0,1]")):
            for m,want in ((mk,0),(mo,bit)):
                pre=f"s_mov_b64 vcc, s[{m}:{m+1}]\n"
                for i in range(4):
                    if (i&bit)!=want: continue
                    for d in range(4):
                        r.append(pre+f"v_cndmask_b32_dpp v{dst+4*i+d}, v{src+4*(i^bit)+d}, v{src+4*i+d}, vcc quad_perm:{perm} row_mask:0xf bank_mask:0xf"); pre=""
        return r
    segs=[("W",j) for j in range(8)]+[("KV",n) for n in range(16)]
    abase={"K":None,"V":None}
    def set_addr(sg):
        if sg[0]=="W": return []
        ty,t=seq[sg[1]]; b=slot(sg[1])&~0xffff
        if abase[ty]==b: return []
        abase[ty]=b
        if ty=="K": return [f"v_add_u32 v{vKA}, {b}, v{vK0}"]+[f"v_xor_b32 v{vKA+s}, {s<<5}, v{vKA}" for s in range(1,8)]
        return [f"v_add_u32 v{vVA}, {b}, v{vV0}"]+[f"v_xor_b32 v{vVA+d}, {d*64}, v{vVA}" for d in range(1,4)]
    def rd(sg,i):
        F=vF+4*(i&7)
        if sg[0]=="W":
            js,db=i>>2,i&3
            for r in range(2): a(f"ds_read_b64_tr_b16 {vr(F+2*r,2)}, v{vVA+db} offset:{(sg[1]&3)*16384+(8*js+4*r)*256}"); lg.issue((sg,i))
            return
        ty,t=seq[sg[1]]; off=slot(sg[1])&0xffff
        if ty=="K": a(f"ds_read_b128 {vr(F,4)}, v{vKA+(i&7)} offset:{off+(i>>3)*2048}"); lg.issue((sg,i))
        else:
            ks,db=i>>2,i&3
            for r in range(2): a(f"ds_read_b64_tr_b16 {vr(F+2*r,2)}, v{vVA+db} offset:{off+(32*r+4*ks)*256}"); lg.issue((sg,i))
    def mm(sg,i):
        F=vF+4*(i&7)
        if sg[0]=="W": mfma(vO+16*(i&3),F,vXF+16*(sg[1]&3)+4*(i>>2),"0" if sg[1]==0 and i<4 else vO+16*(i&3)); return
        ty,t=seq[sg[1]]
        if ty=="K": mfma(vS+16*(i>>3),F,vQ+4*(i&7),"0" if (i&7)==0 else vS+16*(i>>3))
        else: mfma(vO+16*(i&3),F,vP+4*(i>>2),"0" if t==0 and i<4 else vO+16*(i&3))
    def max_ops(first):
        r=[f"v_max3_f32 v{vT0}, v{vS}, v{vS+1}, v{vS+2}"]+[f"v_max3_f32 v{vT0}, v{vS+i}, v{vS+i+1}, v{vT0}" for i in range(3,15,2)]
        r+=[f"v_max3_f32 v{vT1}, v{vS+16}, v{vS+17}, v{vS+15}"]+[f"v_max3_f32 v{vT1}, v{vS+i}, v{vS+i+1}, v{vT1}" for i in range(18,32,2)]
        r+=[f"v_max_f32 v{vT0}, v{vT0}, v{vT1}",f"v_mul_f32 v{vT0}, s{sC}, v{vT0}",f"v_mov_b32 v{vT1}, v{vT0}"]
        if first: r+=[f"s_nop 1\nv_permlane32_swap_b32 v{vT0}, v{vT1}",f"s_nop 0\nv_max_f32 v{vM}, v{vT0}, v{vT1}"]
        else:
            r+=[f"v_add_f32 v{vT2}, 0x41000000, v{vM}",f"s_nop 0\nv_permlane32_swap_b32 v{vT0}, v{vT1}",f"s_nop 0\nv_max_f32 v{vT0}, v{vT0}, v{vT1}"]
            r+=[f"v_cmp_gt_f32 vcc, v{vT0}, v{vT2}",f"s_nop 1\nv_cndmask_b32 v{vT0}, v{vM}, v{vT0}, vcc",f"v_sub_f32 v{vAl}, v{vM}, v{vT0}",f"v_mov_b32 v{vM}, v{vT0}"]
        r+=[f"v_fma_f32 v{vE+i}, v{vS+i}, s{sC}, -v{vM}" for i in range(32)]
        return r
    NE=int(opt("ne","8"))
    def exp_ops(first,lo,hi):
        r=[f"v_exp_f32 v{vE+i}, v{vE+i}" for i in range(lo,hi)]
        return r
    def fin_ops(first):
        r=[]; pend=list(range(0,NE,2))
        def fin(i):
            if first and i==0: r.extend([f"v_mov_b32 v{vLs}, v{vE}",f"v_mov_b32 v{vLs2}, v{vE+1}"])
            else: r.extend([f"v_add_f32 v{vLs}, v{vLs}, v{vE+i}",f"v_add_f32 v{vLs2}, v{vLs2}, v{vE+i+1}"])
            r.append(f"v_cvt_pk_bf16_f32 v{vP+i//2}, v{vE+i}, v{vE+i+1}")
        for i in range(NE,32,2):
            r.extend(exp_ops(first,i,i+2))
            if pend: fin(pend.pop(0))
            pend.append(i)
        if len(pend)==1: r.append("s_nop 0")
        for i in pend: fin(i)
        return r
    cost=lambda s: 2 if s.startswith("v_exp") else 1
    vm.wait([("W",0),("X",0)]); a("s_barrier"); stamp()
    for i in range(PD): rd(segs[0],i)
    for s_ in tr_ops(0): a(s_)
    for si,sg in enumerate(segs):
        nxt=segs[si+1] if si+1<len(segs) else None
        fill=[]; loads=[]; start=0; ty=None
        if sg[0]=="W":
            j=sg[1]
            if j<7: vm.wait([("X",j+1)]); fill=tr_ops(j+1)
            if j+3<8: loads=ld_w(j+3)+ld_x(j+3)
            loads+=kv_early(j+3)
            if str(j)==opt("pfw","-"): loads.append(pf_wo)
        else:
            n=sg[1]; ty,t=seq[n]
            if n+4<16: loads=ld_kv(n+4)
            if n==11 and REG: loads=[lambda p=p:st_reg(p) for p in range(4)]
            if n==0:
                a("s_nop 7\ns_nop 3")
                for i in range(32): a(f"v_cvt_pk_bf16_f32 v{vQ+i}, v{vO+2*i}, v{vO+2*i+1}")
                a("s_nop 0")
            elif ty=="K": fill=fin_ops(t==1)
            elif t<7-1+1 and n<15 and t<7:
                if n<=14 and t<=6: fill=max_ops(False)+exp_ops(False,0,NE); start=1
            if n==15:
                fill=[]
                for s_ in fin_ops(False): a(s_)
                a("s_nop 0")
        tot=sum(cost(x) for x in fill); acc=0; last=14 if ty=="K" or sg[0]=="W" else 15
        for i in range(16):
            lg.wait([(sg,i)]); mm(sg,i)
            if i+PD<16: rd(sg,i+PD)
            elif nxt: rd(nxt,i+PD-16)
            if i==BAR and nxt:
                for s_ in set_addr(nxt): a(s_)
                vm.wait([nxt]); a("s_barrier")
            if i>=BAR and loads:
                k=-(-len(loads)//(16-i))
                for _ in range(k): loads.pop(0)()
            while fill and i>=start and acc<tot*(i+1-start)/(last+1-start):
                x=fill.pop(0); acc+=cost(x); a(x)
        assert not fill and not loads
        if sg==("KV",0):
            a("s_nop 5")
            for s_ in max_ops(True)+exp_ops(True,0,NE): a(s_)
        if ty=="V" and t<7:
            a(f"s_cbranch_vccz L1_nr{t}\nv_exp_f32 v{vAl}, v{vAl}\ns_nop 7\ns_nop 3")
            a(f"v_mul_f32 v{vLs}, v{vAl}, v{vLs}\nv_mul_f32 v{vLs2}, v{vAl}, v{vLs2}")
            for i in range(64): a(f"v_mul_f32 v{vO+i}, v{vAl}, v{vO+i}")
            a(f"L1_nr{t}:")
        if ST: lg.done=len(lg.q); stamp()
    a(f"v_add_f32 v{vLs}, v{vLs}, v{vLs2}\nv_lshlrev_b32 v{vT3}, 4, v{vL}\nv_mov_b32 v{vT1}, v{vLs}\ns_nop 1\nv_permlane32_swap_b32 v{vLs}, v{vT1}\ns_nop 1\nv_add_f32 v{vLs}, v{vLs}, v{vT1}\nv_rcp_f32 v{vT0}, v{vLs}")
    a(f"s_lshl_b32 s{sT}, s{sBr}, 3\ns_add_u32 s{sT}, s{sT}, s{sB}\ns_lshl_b32 s{sT}, s{sT}, 2\ns_add_u32 s{sT}, s{sT}, s{sQb}\ns_lshl_b32 s{sT}, s{sT}, 5\ns_add_u32 s{sT}, s{sT}, s{sHead}\ns_lshl_b32 s{sT}, s{sT}, 13\ns_add_u32 s{sT2}, s{sT}, 4096")
    for f in range(8):
        for i in range(8): a(f"v_mul_f32 v{vO+8*f+i}, v{vT0}, v{vO+8*f+i}")
        for i in range(4): a(f"v_cvt_pk_bf16_f32 v{vS+4*f+i}, v{vO+8*f+2*i}, v{vO+8*f+2*i+1}")
        a(f"buffer_store_dwordx4 {vr(vS+4*f,4)}, v{vT3}, s[{SO}:{SO+3}], s{sT if f<4 else sT2} offen offset:{(f&3)*1024} {OSP}")
    stamp(); a("s_waitcnt vmcnt(0)"); stamp_out(0,vT0,sW)
    a("L1_end:\ns_endpgm")
def kernel2():
    head(K2)
    a("s_cmp_ge_u32 s2, 256\ns_cbranch_scc1 L2_end")
    stamp_init(10)
    ptrs()
    SW,SO,SD=32,36,40
    sW,sBr,sRt,sCt,sT,sT2,sO0,sO1,sWo,sLw=52,53,54,55,56,57,58,59,60,61
    vL,vOA,vDW,vA0,vA1,vT0,vT1,vT2,vT3=1,2,3,4,5,6,7,8,9
    vAcc=12; vWF=76; vOF=92; D=int(opt("d","8")); BAR2=opt("bar","0")=="1"; ORD=opt("ord","0")
    sTb,sWb,sOb0,sOb1=62,64,65,66
    def order(g):
        if ORD=="0": return list(range(16))
        if ORD=="2": return [(i&8)|((i+2*g)&7) for i in range(16)]
        if ORD=="3": return [(i&12)|((i+g)&3) for i in range(16)]
        lead={0:g}; lead.update({1+g+4*k:4+g+4*k for k in range(3)}); rest=[b for b in range(16) if b%4!=g]
        if ORD=="4": rest[0:3]=[(g+k)&3 for k in (1,2,3)]
        return [lead[i] if i in lead else rest.pop(0) for i in range(16)]
    a(f"v_lshrrev_b32 v{vT0}, 6, v0\nv_and_b32 v{vL}, 63, v0\nv_readfirstlane_b32 s{sW}, v{vT0}")
    a(f"s_and_b32 s{sBr}, s2, 1\ns_lshr_b32 s{sT}, s2, 1\ns_and_b32 s{sT}, s{sT}, 3\ns_lshl_b32 s{sT}, s{sT}, 2\ns_lshr_b32 s{sT2}, s2, 3\ns_and_b32 s{sT2}, s{sT2}, 3\ns_add_u32 s{sRt}, s{sT}, s{sT2}\ns_lshr_b32 s{sCt}, s2, 5")
    a(f"v_lshlrev_b32 v{vOA}, 4, v{vL}")
    a(f"v_lshrrev_b32 v{vT0}, 3, v{vL}\nv_and_b32 v{vT1}, 7, v{vL}\nv_bfe_u32 v{vT2}, v{vL}, 4, 1\nv_lshlrev_b32 v{vT2}, 2, v{vT2}\nv_xor_b32 v{vT1}, v{vT1}, v{vT2}\nv_lshlrev_b32 v{vT1}, 4, v{vT1}\nv_lshl_add_u32 v{vDW}, v{vT0}, 10, v{vT1}")
    a("s_waitcnt lgkmcnt(0)")
    a(f"s_cmp_eq_u32 s{sBr}, 1")
    srd(SW,12,22,0 if opt('nowo','0')=='1' else 0x400000); srd(SO,28,None,0 if opt('noo','0')=='1' else 0x1000000); srd(SD,24,None,0x200000)
    a(f"s_lshl_b32 s{sO0}, s{sBr}, 4\ns_add_u32 s{sO0}, s{sO0}, s{sRt}\ns_lshl_b32 s{sO0}, s{sO0}, 19\ns_lshl_b32 s{sT}, s{sW}, 15\ns_add_u32 s{sO0}, s{sO0}, s{sT}\ns_add_u32 s{sO1}, s{sO0}, 0x40000")
    a(f"s_lshl_b32 s{sWo}, s{sW}, 19\ns_lshl_b32 s{sT}, s{sCt}, 7\ns_add_u32 s{sWo}, s{sWo}, s{sT}\ns_lshl_b32 s{sLw}, s{sW}, 14")
    a(f"s_add_u32 s{sT}, s{sRt}, s{sCt}\ns_and_b32 s{sT}, s{sT}, 3")
    for g in range(4):
        t=sum(b<<(4*i) for i,b in enumerate(order(g))); assert sorted(order(g))==list(range(16))
        if g==0: a(f"s_mov_b32 s{sTb}, {t&0xffffffff:#x}\ns_mov_b32 s{sTb+1}, {t>>32:#x}")
        else: a(f"s_cmp_eq_u32 s{sT}, {g}\ns_cmov_b32 s{sTb}, {t&0xffffffff:#x}\ns_cmov_b32 s{sTb+1}, {t>>32:#x}")
    def load(s):
        sl=s%D
        if s%2==0:
            a(f"s_bfe_u32 s{sT}, s{sTb+(s>>4)}, {0x40000+4*((s>>1)&7):#x}\ns_lshl_b32 s{sWb}, s{sT}, 15\ns_add_u32 s{sWb}, s{sWb}, s{sWo}")
            a(f"s_lshl_b32 s{sT}, s{sT}, 11\ns_add_u32 s{sOb0}, s{sO0}, s{sT}\ns_add_u32 s{sOb1}, s{sO1}, s{sT}")
            if BAR2 and s: a("s_barrier")
        for n in range(2):
            a(f"s_add_u32 m0, s{sLw}, {sl*2048+n*1024}\ns_add_u32 s{sT}, s{sWb}, {(16*(s&1)+8*n)*1024}")
            a(f"buffer_load_dwordx4 v{vDW}, s[{SW}:{SW+3}], s{sT} offen {WOP} lds")
        for rb in range(2): a(f"buffer_load_dwordx4 {vr(vOF+8*sl+4*rb,4)}, v{vOA}, s[{SO}:{SO+3}], s{sOb1 if rb else sOb0} offen offset:{(s&1)*1024} {OLP}")
    for s in range(D): load(s)
    a(f"v_bfe_u32 v{vT0}, v{vL}, 2, 2\nv_lshrrev_b32 v{vT1}, 5, v{vL}\nv_lshl_add_u32 v{vT1}, v{vT1}, 2, v{vT0}\nv_lshlrev_b32 v{vA0}, 7, v{vT1}")
    a(f"v_lshrrev_b32 v{vT0}, 1, v{vT0}\nv_lshl_add_u32 v{vA0}, v{vT0}, 6, v{vA0}\nv_and_b32 v{vT0}, 1, v{vL}\nv_lshl_add_u32 v{vA0}, v{vT0}, 5, v{vA0}")
    a(f"v_bfe_u32 v{vT0}, v{vL}, 4, 1\nv_lshl_add_u32 v{vA0}, v{vT0}, 4, v{vA0}\nv_bfe_u32 v{vT0}, v{vL}, 1, 1\nv_lshl_add_u32 v{vA0}, v{vT0}, 3, v{vA0}")
    a(f"v_add_u32 v{vA0}, s{sLw}, v{vA0}\nv_xor_b32 v{vA1}, 64, v{vA0}")
    def wread(s):
        for nb in range(2):
            for rd in range(2): a(f"ds_read_b64_tr_b16 {vr(vWF+(s&1)*8+nb*4+rd*2,2)}, v{vA1 if nb else vA0} offset:{(s%D)*2048+rd*1024}")
    NS=32
    a(f"s_waitcnt vmcnt({4*(D-1)})"); wread(0)
    for s in range(NS):
        if s+1<NS:
            a(f"s_waitcnt vmcnt({4*(min(NS,s+D)-(s+2))})"); wread(s+1); a("s_waitcnt lgkmcnt(4)")
        else: a("s_waitcnt lgkmcnt(0)")
        for nb in range(2):
            for rb in range(2): mfma(vAcc+16*(2*nb+rb), vWF+(s&1)*8+nb*4, vOF+8*(s%D)+4*rb, "0" if s==0 else vAcc+16*(2*nb+rb))
        if s%2==0: stamp()
        if s+D<NS: load(s+D)
    a(f"v_add_u32 v{vT0}, s{sLw}, v{vOA}\ns_lshl_b32 s{sT}, s{sW}, 11\nv_add_u32 v{vT1}, s{sT}, v{vOA}\nv_add_u32 v{vT2}, 0x10000, v{vT1}\ns_nop 7")
    for p in range(16): a(f"ds_write_b128 v{vT0}, {vr(vAcc+4*p,4)} offset:{p*1024}")
    a("s_waitcnt lgkmcnt(0)"); stamp(); a("s_barrier"); stamp()
    for w in range(8):
        for p in range(2): a(f"ds_read_b128 {vr(vAcc+8*w+4*p,4)}, v{vT1 if w<4 else vT2} offset:{(w&3)*16384+p*1024}")
    a(f"v_and_b32 v{vT0}, 31, v{vL}\nv_lshlrev_b32 v{vT0}, 11, v{vT0}\nv_lshrrev_b32 v{vT3}, 5, v{vL}\nv_lshl_add_u32 v{vT0}, v{vT3}, 5, v{vT0}")
    a(f"s_lshl_b32 s{sT}, s{sRt}, 1\ns_bfe_u32 s{sT2}, s{sW}, 0x10001\ns_add_u32 s{sT}, s{sT}, s{sT2}\ns_lshl_b32 s{sT}, s{sT}, 16")
    a(f"s_lshl_b32 s{sT2}, s{sBr}, 10\ns_add_u32 s{sT}, s{sT}, s{sT2}\ns_lshl_b32 s{sT2}, s{sCt}, 7\ns_add_u32 s{sT}, s{sT}, s{sT2}")
    a(f"s_lshr_b32 s{sT2}, s{sW}, 2\ns_lshl_b32 s{sT2}, s{sT2}, 6\ns_add_u32 s{sT}, s{sT}, s{sT2}\ns_and_b32 s{sT2}, s{sW}, 1\ns_lshl_b32 s{sT2}, s{sT2}, 4\ns_add_u32 s{sT}, s{sT}, s{sT2}")
    for w in range(1,8):
        a(f"s_waitcnt lgkmcnt({14-2*w})")
        for i in range(8): a(f"v_add_f32 v{vAcc+i}, v{vAcc+i}, v{vAcc+8*w+i}")
    for i in range(4): a(f"v_cvt_pk_bf16_f32 v{vWF+i}, v{vAcc+2*i}, v{vAcc+2*i+1}")
    a(f"buffer_store_dwordx4 {vr(vWF,4)}, v{vT0}, s[{SD}:{SD+3}], s{sT} offen {OUTP}")
    a("s_waitcnt vmcnt(0)"); stamp_out(1,vT0,sW)
    a("s_waitcnt vmcnt(0)\nL2_end:\ns_endpgm")
kernel1(); kernel2()
a('.section .rodata,"a"\n.p2align 6'); a(desc(K1,256)); a(".p2align 6"); a(desc(K2,160))
print("\n".join(o))
```

```python
import sys, os
NAME="concat_heads__mha_block_cached__gqa_block_cached__near_ridge"
OPT=dict(a.split("=") for a in sys.argv[1:] if "=" in a)
def opt(k,d): return OPT.get(k,d)
KVP=opt("kv","nt"); WP=opt("w",""); XP=opt("x",""); OSP=opt("os",""); OLP=opt("ol",""); WOP=opt("wo",""); OUTP=opt("out","")
o=[]
def a(s): o.append(s)
def vr(b,n): return f"v[{b}:{b+n-1}]"
def desc(name,vg):
    return f'''.amdhsa_kernel {name}
  .amdhsa_next_free_vgpr {vg}
  .amdhsa_next_free_sgpr 102
  .amdhsa_accum_offset {vg}
  .amdhsa_group_segment_fixed_size 0
  .amdhsa_kernarg_size 104
  .amdhsa_user_sgpr_count 2
  .amdhsa_user_sgpr_kernarg_segment_ptr 1
  .amdhsa_system_sgpr_workgroup_id_x 1
.end_amdhsa_kernel'''
def head(name): a(f".globl {name}\n.p2align 8\n.type {name},@function\n{name}:")
def srd(d,a_lo,b_lo,size):
    if b_lo is None: a(f"s_mov_b32 s{d}, s{a_lo}\ns_mov_b32 s{d+1}, s{a_lo+1}")
    else: a(f"s_cselect_b32 s{d}, s{b_lo}, s{a_lo}\ns_cselect_b32 s{d+1}, s{b_lo+1}, s{a_lo+1}")
    a(f"s_mov_b32 s{d+2}, {size:#x}\ns_mov_b32 s{d+3}, 0x00020000")
def mfma(d,x,y,c): a(f"v_mfma_f32_32x32x16_bf16 {vr(d,16)}, {vr(x,4)}, {vr(y,4)}, {c if isinstance(c,str) else vr(c,16)}")
ST=opt("st","0")=="1"
def stamp(real=False):
    if not ST: return
    a(f"{'s_memrealtime' if real else 's_memtime'} s[96:97]\ns_waitcnt lgkmcnt(0)\ns_mov_b32 m0, s99\ns_add_u32 s99, s99, 1\nv_writelane_b32 v{STV[0]}, s96, m0")
STV=[0]
def stamp_init(v):
    STV[0]=v
    if ST: a(f"s_mov_b32 s99, 0\nv_mov_b32 v{v}, 0"); stamp(True); stamp()
def stamp_out(k,vt,sw):
    if not ST: return
    stamp(); stamp(True)
    a(f"s_mov_b32 s92, s28\ns_mov_b32 s93, s29\ns_mov_b32 s94, 0x10000000\ns_mov_b32 s95, 0x20000")
    a(f"s_lshl_b32 s96, s2, 3\ns_add_u32 s96, s96, s{sw}\ns_lshl_b32 s96, s96, 8\ns_add_u32 s96, s96, {0x2000000+k*0x80000}")
    a(f"v_and_b32 v{vt}, 63, v0\nv_lshlrev_b32 v{vt}, 2, v{vt}\nbuffer_store_dword v{STV[0]}, v{vt}, s[92:95], s96 offen\ns_waitcnt vmcnt(0)")
K1=NAME+"_kernel"; K2=NAME+"_oproj_kernel"
a(open("cdna_kernels/"+NAME+".s.ref").read().split("; Override")[0].rstrip())
a(f"; @launch kernel={K1} grid=(256,1,1) block=(512,1,1) lds=163840")
a(f"; @launch kernel={K2} grid=(256,1,1) block=(512,1,1) lds=131072")
a('.amdgcn_target "amdgcn-amd-amdhsa--gfx950"\n.text')
def ptrs():
    if opt("bad","0")=="1": a("s_and_b32 s3, s2, 7\ns_lshl_b32 s3, s3, 5\ns_lshr_b32 s2, s2, 3\ns_or_b32 s2, s2, s3")
    a("s_load_dwordx16 s[4:19], s[0:1], 0\ns_load_dwordx8 s[20:27], s[0:1], 64\ns_load_dwordx2 s[28:29], s[0:1], 96")
class Cnt:
    def __init__(s,name,mx): s.q=[]; s.name=name; s.mx=mx; s.done=0
    def issue(s,tag): s.q.append(tag)
    def wait(s,tags):
        idx=[i for i,t in enumerate(s.q) if t in tags]
        if not idx or idx[-1]<s.done: return
        n=len(s.q)-1-idx[-1]
        if n>s.mx: n=s.mx
        s.done=len(s.q)-n
        a(f"s_waitcnt {s.name}({n})")
def kernel1():
    head(K1)
    a("s_cmp_ge_u32 s2, 256\ns_cbranch_scc1 L1_end")
    stamp_init(19)
    ptrs()
    SX,SK,SV,SW,SO=32,36,40,44,48
    sW,sHalf,sQb,sHead,sB,sBr=52,53,54,55,56,57
    sKV,sT,sT2,sC,sLw,sLw2,sJ0,sAny=58,59,60,64,65,66,67,78
    sEv,sOd,sLo,sHi=68,70,72,74
    sXo,sWo=76,77
    vL,vDK,vDV,vDW,vX,vK0,vV0,vW0=1,2,3,4,5,6,7,8
    vM,vLs,vLs2,vAl,vT0,vT1,vT2,vT3=9,10,11,12,13,14,15,16
    vVA=20; vKA=24
    vQ=32; vO=64; vS=128; vE=160; vP=192; vF=208
    vXF=128; vXT=192
    PD=int(opt("pd","6")); BAR=15-PD
    vm=Cnt("vmcnt",63); lg=Cnt("lgkmcnt",15)
    a(f"v_lshrrev_b32 v{vT0}, 6, v0\nv_and_b32 v{vL}, 63, v0\nv_readfirstlane_b32 s{sW}, v{vT0}")
    a(f"s_and_b32 s{sBr}, s2, 1\ns_lshr_b32 s{sT}, s2, 1\ns_and_b32 s{sT}, s{sT}, 3\ns_lshl_b32 s{sT}, s{sT}, 3")
    a(f"s_lshr_b32 s{sT2}, s2, 3\ns_and_b32 s{sT2}, s{sT2}, 7\ns_add_u32 s{sHead}, s{sT}, s{sT2}")
    a(f"s_lshr_b32 s{sHalf}, s{sW}, 2\ns_and_b32 s{sQb}, s{sW}, 3\ns_lshr_b32 s{sB}, s2, 6\ns_lshl_b32 s{sB}, s{sB}, 1")
    ROT=opt("rot","0")
    def order(g):
        if ROT=="0": return list(range(8))
        if ROT=="2": return [g,4+g]+[x for k in (1,2,3) for x in ((g+k)&3,4+((g+k)&3))]
        if ROT=="3": return [(g+k)&3 for k in range(4)]+[4+((g+k)&3) for k in range(4)]
        lead={0:g,1+g:4+g}; rest=[(g+k)&3 for k in (1,2,3)]+[b for b in range(4,8) if b!=4+g]
        return [lead[i] if i in lead else rest.pop(0) for i in range(8)]
    a(f"s_lshr_b32 s{sT}, s2, 6\ns_add_u32 s{sT}, s{sT}, s{sT2}\ns_and_b32 s{sT}, s{sT}, 3")
    for g in range(4):
        t=sum(b<<(4*i) for i,b in enumerate(order(g))); assert sorted(order(g))==list(range(8))
        a(f"s_mov_b32 s{sJ0}, {t:#x}" if g==0 else f"s_cmp_eq_u32 s{sT}, {g}\ns_cmov_b32 s{sJ0}, {t:#x}")
    a(f"s_add_u32 s{sB}, s{sB}, s{sHalf}")
    a(f"v_lshrrev_b32 v{vT0}, 4, v{vL}\nv_and_b32 v{vT1}, 15, v{vL}\nv_lshlrev_b32 v{vT2}, 2, v{vT0}\nv_xor_b32 v{vT1}, v{vT1}, v{vT2}")
    a(f"v_lshlrev_b32 v{vT2}, 4, v{vT1}\nv_lshl_add_u32 v{vDW}, v{vT0}, 13, v{vT2}\nv_lshl_add_u32 v{vDV}, v{vT0}, 8, v{vT2}")
    a(f"v_xor_b32 v{vT1}, s{sQb}, v{vT1}\nv_lshlrev_b32 v{vT2}, 4, v{vT1}\nv_lshl_add_u32 v{vDK}, v{vT0}, 8, v{vT2}")
    a(f"v_bfe_u32 v{vT0}, v{vL}, 2, 3\nv_lshlrev_b32 v{vT0}, 12, v{vT0}\nv_lshrrev_b32 v{vT1}, 5, v{vL}\nv_lshlrev_b32 v{vT1}, 6, v{vT1}")
    a(f"v_and_b32 v{vT2}, 3, v{vL}\nv_lshlrev_b32 v{vT2}, 4, v{vT2}\nv_add3_u32 v{vX}, v{vT0}, v{vT1}, v{vT2}")
    a(f"s_lshl_b32 s{sXo}, s{sB}, 2\ns_add_u32 s{sXo}, s{sXo}, s{sQb}\ns_lshl_b32 s{sXo}, s{sXo}, 15")
    a(f"s_lshl_b32 s{sWo}, s{sW}, 16\ns_lshl_b32 s{sT}, s{sHead}, 8\ns_add_u32 s{sWo}, s{sWo}, s{sT}")
    a(f"s_lshl_b32 s{sKV}, s{sB}, 5\ns_add_u32 s{sKV}, s{sKV}, s{sHead}\ns_lshl_b32 s{sKV}, s{sKV}, 17\ns_lshl_b32 s{sT}, s{sQb}, 12\ns_add_u32 s{sKV}, s{sKV}, s{sT}")
    a(f"s_lshl_b32 s{sLw}, s{sW}, 12\ns_lshl_b32 s{sLw2}, s{sW}, 11")
    a("s_waitcnt lgkmcnt(0)")
    a(f"s_cmp_eq_u32 s{sBr}, 1")
    srd(SW,10,20,0 if opt('nowq','0')=='1' else 0x400000); srd(SX,4,14,0 if opt('nox','0')=='1' else 0x100000)
    ksz=0 if opt('nokv','0')=='1' else 0x2000000
    srd(80,12,22,0x400000); srd(SK,6,16,ksz); srd(SV,8,18,ksz); srd(SO,28,None,0x1000000)
    def ld_w(j):
        def f(n):
            if n==0: a(f"s_bfe_u32 s{sT2}, s{sJ0}, {0x40000+4*j:#x}\ns_lshl_b32 s{sT2}, s{sT2}, 19\ns_add_u32 s{sT2}, s{sT2}, s{sWo}")
            a(f"s_add_u32 m0, s{sLw2}, {(j&3)*16384+n*1024}")
            a(f"s_add_u32 s{sT2}, s{sT2}, {n*32768}")
            a(f"buffer_load_dwordx4 v{vDW}, s[{SW}:{SW+3}], s{sT2} offen {WP} lds"); vm.issue(("W",j))
        return [lambda n=n:f(n) for n in range(2)]
    def ld_x(j):
        def f(i):
            if i==0: a(f"s_bfe_u32 s{sT2}, s{sJ0}, {0x40000+4*j:#x}\ns_lshl_b32 s{sT2}, s{sT2}, 7\ns_add_u32 s{sT2}, s{sT2}, s{sXo}")
            a(f"buffer_load_dwordx4 {vr(vXF+16*(j&3)+4*i,4)}, v{vX}, s[{SX}:{SX+3}], s{sT2} offen offset:{i*1024} {XP}"); vm.issue(("X",j))
        return [lambda i=i:f(i) for i in range(4)]
    def pf_wo():
        a(f"s_lshr_b32 s{sT2}, s2, 1\ns_lshl_b32 s{sT2}, s{sT2}, 15\ns_add_u32 s{sT2}, s{sT2}, s{sLw}\nv_lshlrev_b32 v17, 6, v{vL}")
        a(f"buffer_load_dword v18, v17, s[80:83], s{sT2} offen"); vm.issue("pf")
    seq=[("K",0)]
    for t in range(7): seq+=[("K",t+1),("V",t)]
    seq+=[("V",7)]
    slot=lambda n:((n+2)%5)*32768
    def ld_kv(n,p):
        ty,t=seq[n]
        def f():
            a(f"s_add_u32 m0, s{sLw}, {slot(n)}\ns_add_u32 s{sT}, s{sKV}, {t*16384}")
            r,v=(SK,vDK) if ty=="K" else (SV,vDV)
            a(f"buffer_load_dwordx4 v{v}, s[{r}:{r+3}], s{sT} offen offset:{p*1024} {KVP} lds"); vm.issue(("KV",n))
        return f
    KS=[int(c) for c in opt("ks","22222222")]; kq=[(n,p) for n in range(4) for p in range(4)]
    assert sum(KS)==16 and sum(KS[:6])<=12
    def kv_early(pos): return [ld_kv(*kq.pop(0)) for _ in range(KS[pos])]
    UP=int(opt("up","2"))
    w1=ld_w(1)
    for f in ld_w(0)+ld_x(0)+ld_x(1)+w1+(ld_w(2)+ld_x(2) if UP==3 else []): f()
    if opt("pfw","-")=="p": pf_wo()
    a(f"v_bfe_u32 v{vT0}, v{vL}, 2, 2\nv_lshrrev_b32 v{vT1}, 5, v{vL}\nv_bfe_u32 v{vT2}, v{vL}, 4, 1")
    a(f"v_mul_u32_u24 v{vT3}, 320, v{vT0}\nv_lshl_add_u32 v{vT3}, v{vT2}, 5, v{vT3}")
    a(f"v_lshl_add_u32 v{vVA}, v{vT1}, 13, v{vT3}\nv_and_b32 v{vT2}, 1, v{vL}\nv_lshl_add_u32 v{vVA}, v{vT2}, 4, v{vVA}\nv_bfe_u32 v{vT2}, v{vL}, 1, 1\nv_lshl_add_u32 v{vVA}, v{vT2}, 3, v{vVA}")
    for db in range(1,4): a(f"v_xor_b32 v{vVA+db}, {db*64}, v{vVA}")
    a(f"v_lshl_add_u32 v{vV0}, v{vT1}, 12, v{vT3}\nv_and_b32 v{vT2}, 3, v{vL}\nv_lshl_add_u32 v{vV0}, v{vT2}, 3, v{vV0}")
    a(f"s_lshl_b32 s{sT}, s{sHalf}, 14\nv_add_u32 v{vV0}, s{sT}, v{vV0}")
    a(f"v_lshlrev_b32 v{vK0}, 12, v{vT0}\nv_bfe_u32 v{vT3}, v{vL}, 4, 1\nv_lshl_add_u32 v{vK0}, v{vT3}, 10, v{vK0}\nv_lshl_add_u32 v{vK0}, v{vT2}, 8, v{vK0}")
    a(f"v_lshl_add_u32 v{vT3}, v{vT2}, 2, v{vT0}\nv_xor_b32 v{vT3}, v{vT3}, v{vT1}\nv_lshl_add_u32 v{vK0}, v{vT3}, 4, v{vK0}\nv_add_u32 v{vK0}, s{sT}, v{vK0}")
    for r,v in ((sEv,0x55555555),(sOd,0xaaaaaaaa),(sLo,0x33333333),(sHi,0xcccccccc)): a(f"s_mov_b32 s{r}, {v:#x}\ns_mov_b32 s{r+1}, {v:#x}")
    a(f"s_mov_b32 s{sC}, 0x3e0293ee")
    if opt("prio","0")=="1": a(f"s_cmp_eq_u32 s{sHalf}, 0\ns_cbranch_scc1 L1_noprio\ns_setprio 1\nL1_noprio:")
    def tr_ops(j):
        X=vXF+16*(j&3); r=[]
        for src,dst,bit,mk,mo,perm in ((X,vXT,1,sEv,sOd,"[1,0,3,2]"),(vXT,X,2,sLo,sHi,"[2,3,0,1]")):
            for m,want in ((mk,0),(mo,bit)):
                pre=f"s_mov_b64 vcc, s[{m}:{m+1}]\n"
                for i in range(4):
                    if (i&bit)!=want: continue
                    for d in range(4):
                        r.append(pre+f"v_cndmask_b32_dpp v{dst+4*i+d}, v{src+4*(i^bit)+d}, v{src+4*i+d}, vcc quad_perm:{perm} row_mask:0xf bank_mask:0xf"); pre=""
        return r
    segs=[("W",j) for j in range(8)]+[("KV",n) for n in range(16)]
    abase={"K":None,"V":None}
    def set_addr(sg):
        if sg[0]=="W": return []
        ty,t=seq[sg[1]]; b=slot(sg[1])&~0xffff
        if abase[ty]==b: return []
        abase[ty]=b
        if ty=="K": return [f"v_add_u32 v{vKA}, {b}, v{vK0}"]+[f"v_xor_b32 v{vKA+s}, {s<<5}, v{vKA}" for s in range(1,8)]
        return [f"v_add_u32 v{vVA}, {b}, v{vV0}"]+[f"v_xor_b32 v{vVA+d}, {d*64}, v{vVA}" for d in range(1,4)]
    vNM=240; Sb=lambda t:vS+32*(t&1); Pb=lambda t:vNM if t==7 else vP
    def idx(sg,i): return (i&3,i>>2) if sg in (("W",7),("KV",15)) else (i>>2,i&3)
    def rd(sg,i):
        F=vF+4*(i&7); ks,db=idx(sg,i)
        if sg[0]=="W":
            for r in range(2): a(f"ds_read_b64_tr_b16 {vr(F+2*r,2)}, v{vVA+db} offset:{(sg[1]&3)*16384+(8*ks+4*r)*256}"); lg.issue((sg,i))
            return
        ty,t=seq[sg[1]]; off=slot(sg[1])&0xffff
        if ty=="K": a(f"ds_read_b128 {vr(F,4)}, v{vKA+(i&7)} offset:{off+(i>>3)*2048}"); lg.issue((sg,i))
        else:
            for r in range(2): a(f"ds_read_b64_tr_b16 {vr(F+2*r,2)}, v{vVA+db} offset:{off+(32*r+4*ks)*256}"); lg.issue((sg,i))
    def mm(sg,i):
        F=vF+4*(i&7); ks,db=idx(sg,i)
        if sg[0]=="W": mfma(vO+16*db,F,vXF+16*(sg[1]&3)+4*ks,"0" if sg[1]==0 and ks==0 else vO+16*db); return
        ty,t=seq[sg[1]]
        if ty=="K": mfma(Sb(t)+16*(i>>3),F,vQ+4*(i&7),("0" if t==0 else vNM) if (i&7)==0 else Sb(t)+16*(i>>3))
        else: mfma(vO+16*db,F,Pb(t)+4*ks,"0" if t==0 and ks==0 else vO+16*db)
    def max_a(S): return [f"v_max3_f32 v{vT0}, v{S}, v{S+1}, v{S+2}"]+[f"v_max3_f32 v{vT0}, v{S+i}, v{S+i+1}, v{vT0}" for i in range(3,15,2)]
    def max_b(S): return [f"v_max3_f32 v{vT1}, v{S+16}, v{S+17}, v{S+15}"]+[f"v_max3_f32 v{vT1}, v{S+i}, v{S+i+1}, v{vT1}" for i in range(18,32,2)]+[f"v_max_f32 v{vT0}, v{vT0}, v{vT1}"]
    xh=f"v_mov_b32 v{vT1}, v{vT0}\ns_nop 1\nv_permlane32_swap_b32 v{vT0}, v{vT1}\ns_nop 1\nv_max_f32 v{vT0}, v{vT0}, v{vT1}"
    def check(t):
        S=Sb(t); r=f"v_cmp_lt_f32 vcc, 0x41000000, v{vT0}\ns_nop 0\ns_cbranch_vccz L1_ok{t}\n{xh}\nv_cmp_lt_f32 vcc, 0x41000000, v{vT0}\ns_nop 1\n"
        r+=f"v_cndmask_b32 v{vT0}, 0, v{vT0}, vcc\nv_exp_f32 v{vAl}, -v{vT0}\n"
        r+="".join(f"v_sub_f32 v{S+i}, v{S+i}, v{vT0}\n" for i in range(32))+"".join(f"v_sub_f32 v{vNM+i}, v{vNM+i}, v{vT0}\n" for i in range(16))
        return r+f"v_mul_f32 v{vLs}, v{vAl}, v{vLs}\nv_mul_f32 v{vLs2}, v{vAl}, v{vLs2}\nL1_ok{t}:"
    NE=int(opt("ne","16"))
    def cvt(t,i): return f"v_cvt_pk_bf16_f32 v{Pb(t)+i//2}, v{Sb(t)+i}, v{Sb(t)+i+1}"
    def sm(t,lo,hi,pack,extra=[]):
        S=Sb(t); r=[]; extra=list(extra)
        for i in range(lo,hi+2,2):
            if i<hi:
                if t==0: r+=[f"v_sub_f32 v{S+k}, v{S+k}, v{vT0}" for k in (i,i+1)]
                r+=[f"v_exp_f32 v{S+k}, v{S+k}" for k in (i,i+1)]
            if extra: r.append(extra.pop(0))
            if i>lo:
                p=i-2
                if t==0 and p==0: r+=[f"v_mov_b32 v{vLs}, v{S}",f"v_mov_b32 v{vLs2}, v{S+1}"]
                else: r+=[f"v_add_f32 v{vLs}, v{vLs}, v{S+p}",f"v_add_f32 v{vLs2}, v{vLs2}, v{S+p+1}"]
                if pack: r.append(cvt(t,p))
        return r+extra
    def qcv(db): return [x for i in range(8) for x in (f"v_mul_f32 v{vO+16*db+2*i}, s{sC}, v{vO+16*db+2*i}",f"v_mul_f32 v{vO+16*db+2*i+1}, s{sC}, v{vO+16*db+2*i+1}")]+[f"v_cvt_pk_bf16_f32 v{vQ+8*db+i}, v{vO+16*db+2*i}, v{vO+16*db+2*i+1}" for i in range(8)]
    def ofin(db):
        r=[]
        for f in (2*db,2*db+1):
            r+=[f"v_mul_f32 v{vO+8*f+i}, v{vT0}, v{vO+8*f+i}" for i in range(8)]+[f"v_cvt_pk_bf16_f32 v{vS+4*f+i}, v{vO+8*f+2*i}, v{vO+8*f+2*i+1}" for i in range(4)]
            r.append(f"buffer_store_dwordx4 {vr(vS+4*f,4)}, v{vT3}, s[{SO}:{SO+3}], s{sT if f<4 else sT2} offen offset:{(f&3)*1024} {OSP}")
        return r
    lsum=[f"v_add_f32 v{vLs}, v{vLs}, v{vLs2}",f"v_lshlrev_b32 v{vT3}, 4, v{vL}",f"v_mov_b32 v{vT1}, v{vLs}\ns_nop 1\nv_permlane32_swap_b32 v{vLs}, v{vT1}\ns_nop 1\nv_add_f32 v{vLs}, v{vLs}, v{vT1}",f"v_rcp_f32 v{vT0}, v{vLs}",
      f"s_lshl_b32 s{sT}, s{sBr}, 3\ns_add_u32 s{sT}, s{sT}, s{sB}\ns_lshl_b32 s{sT}, s{sT}, 2\ns_add_u32 s{sT}, s{sT}, s{sQb}\ns_lshl_b32 s{sT}, s{sT}, 5\ns_add_u32 s{sT}, s{sT}, s{sHead}\ns_lshl_b32 s{sT}, s{sT}, 13\ns_add_u32 s{sT2}, s{sT}, 4096"]
    cost=lambda s: 2 if s.startswith("v_exp") else 1
    at=lambda e,l:[(e,x) for x in l]
    LSP=int(opt("lsp","4")); pend={}
    vm.wait([("W",0),("X",0)]); a("s_barrier"); stamp()
    for i in range(PD): rd(segs[0],i)
    l0=ld_w(2)+ld_x(2) if UP==2 else []
    if opt("pfw","-")=="q": l0.append(pf_wo)
    for k,s_ in enumerate(tr_ops(0)):
        a(s_)
        if k%4==0 and l0: l0.pop(0)()
    a("s_nop 1")
    for si,sg in enumerate(segs):
        nxt=segs[si+1] if si+1<len(segs) else None
        fill=[]; start=0; last=14; ty=None
        def sched(l,g0,sp):
            for k,f in enumerate(l): pend.setdefault(16*si+g0+int(k*sp),[]).append(f)
        if sg[0]=="W":
            j=sg[1]
            if j<7: vm.wait([("X",j+1)]); fill=at(0,tr_ops(j+1))
            else: fill=at(5,qcv(0))+at(9,qcv(1))+at(13,qcv(2)); start=5; last=15
            if j+3<8: sched(ld_x(j+3),0,2)
            l=(ld_w(j+3) if j+3<8 else [])+kv_early(j)+([pf_wo] if str(j)==opt("pfw","-") else [])
            if l: sched(l,BAR,(16-BAR)/len(l))
        else:
            n=sg[1]; ty,t=seq[n]
            if n+4<16: sched([ld_kv(n+4,p) for p in range(4)],BAR,LSP)
            if opt("pfw","-")=="k%d"%n: sched([pf_wo],BAR,1)
            if n==0: fill=at(1,qcv(3))+at(10,max_a(Sb(0))); start=1; last=4
            elif n==1: fill=at(0,sm(0,0,32,True))
            elif ty=="K": fill=at(0,sm(t-1,NE,32,True,[cvt(t-1,i) for i in range(0,NE,2)]))
            elif t<7:
                fill=at(0,max_a(Sb(t+1)))+at(2,max_b(Sb(t+1))+[check(t+1)]+(sm(t+1,0,NE,False) if t<6 else sm(7,0,32,True))); last=15
            else: fill=at(0,lsum)+at(5,ofin(0))+at(9,ofin(1))+at(13,ofin(2)); last=15
        tot=sum(cost(x) for e,x in fill); acc=0
        for i in range(16):
            lg.wait([(sg,i)]); mm(sg,i)
            if i+PD<16: rd(sg,i+PD)
            elif nxt: rd(nxt,i+PD-16)
            if i==BAR and nxt:
                for s_ in set_addr(nxt): a(s_)
                vm.wait([nxt]); a("s_barrier")
            for f in pend.pop(16*si+i,[]): f()
            while fill and i>=max(start,fill[0][0]) and acc<tot*(i+1-start)/(last+1-start):
                x=fill.pop(0)[1]; acc+=cost(x); a(x)
        assert not fill
        if sg==("KV",0):
            a("s_nop 7\ns_nop 3")
            for s_ in max_b(Sb(0))+[xh]+[f"v_sub_f32 v{vNM+i}, 0, v{vT0}" for i in range(16)]+["s_nop 1"]: a(s_)
        if ty=="V" and t<7:
            a(f"s_cbranch_vccz L1_nr{t}\ns_nop 7\ns_nop 3")
            for i in range(64): a(f"v_mul_f32 v{vO+i}, v{vAl}, v{vO+i}")
            a(f"L1_nr{t}:")
            if t==6: a("s_nop 1")
        if ST: lg.done=len(lg.q); stamp()
    assert not pend
    a("s_nop 7")
    for s_ in ofin(3): a(s_)
    stamp(); a("s_waitcnt vmcnt(0)"); stamp_out(0,vT0,sW)
    a("L1_end:\ns_endpgm")
def kernel2():
    head(K2)
    a("s_cmp_ge_u32 s2, 256\ns_cbranch_scc1 L2_end")
    stamp_init(10)
    ptrs()
    SW,SO,SD=32,36,40
    sW,sBr,sRt,sCt,sT,sT2,sO0,sO1,sWo,sLw=52,53,54,55,56,57,58,59,60,61
    vL,vOA,vDW,vA0,vA1,vT0,vT1,vT2,vT3=1,2,3,4,5,6,7,8,9
    vAcc=12; vWF=76; vOF=92; D=int(opt("d","8")); BAR2=opt("bar","0")=="1"; ORD=opt("ord","0")
    sTb,sWb,sOb0,sOb1=62,64,65,66
    def order(g):
        if ORD=="0": return list(range(16))
        if ORD=="2": return [(i&8)|((i+2*g)&7) for i in range(16)]
        if ORD=="3": return [(i&12)|((i+g)&3) for i in range(16)]
        lead={0:g}; lead.update({1+g+4*k:4+g+4*k for k in range(3)}); rest=[b for b in range(16) if b%4!=g]
        if ORD=="4": rest[0:3]=[(g+k)&3 for k in (1,2,3)]
        return [lead[i] if i in lead else rest.pop(0) for i in range(16)]
    a(f"v_lshrrev_b32 v{vT0}, 6, v0\nv_and_b32 v{vL}, 63, v0\nv_readfirstlane_b32 s{sW}, v{vT0}")
    a(f"s_and_b32 s{sBr}, s2, 1\ns_lshr_b32 s{sT}, s2, 1\ns_and_b32 s{sT}, s{sT}, 3\ns_lshl_b32 s{sT}, s{sT}, 2\ns_lshr_b32 s{sT2}, s2, 3\ns_and_b32 s{sT2}, s{sT2}, 3\ns_add_u32 s{sRt}, s{sT}, s{sT2}\ns_lshr_b32 s{sCt}, s2, 5")
    a(f"v_lshlrev_b32 v{vOA}, 4, v{vL}")
    a(f"v_lshrrev_b32 v{vT0}, 3, v{vL}\nv_and_b32 v{vT1}, 7, v{vL}\nv_bfe_u32 v{vT2}, v{vL}, 4, 1\nv_lshlrev_b32 v{vT2}, 2, v{vT2}\nv_xor_b32 v{vT1}, v{vT1}, v{vT2}\nv_lshlrev_b32 v{vT1}, 4, v{vT1}\nv_lshl_add_u32 v{vDW}, v{vT0}, 10, v{vT1}")
    a("s_waitcnt lgkmcnt(0)")
    a(f"s_cmp_eq_u32 s{sBr}, 1")
    srd(SW,12,22,0 if opt('nowo','0')=='1' else 0x400000); srd(SO,28,None,0 if opt('noo','0')=='1' else 0x1000000); srd(SD,24,None,0x200000)
    a(f"s_lshl_b32 s{sO0}, s{sBr}, 4\ns_add_u32 s{sO0}, s{sO0}, s{sRt}\ns_lshl_b32 s{sO0}, s{sO0}, 19\ns_lshl_b32 s{sT}, s{sW}, 15\ns_add_u32 s{sO0}, s{sO0}, s{sT}\ns_add_u32 s{sO1}, s{sO0}, 0x40000")
    a(f"s_lshl_b32 s{sWo}, s{sW}, 19\ns_lshl_b32 s{sT}, s{sCt}, 7\ns_add_u32 s{sWo}, s{sWo}, s{sT}\ns_lshl_b32 s{sLw}, s{sW}, 14")
    a(f"s_add_u32 s{sT}, s{sRt}, s{sCt}\ns_and_b32 s{sT}, s{sT}, 3")
    for g in range(4):
        t=sum(b<<(4*i) for i,b in enumerate(order(g))); assert sorted(order(g))==list(range(16))
        if g==0: a(f"s_mov_b32 s{sTb}, {t&0xffffffff:#x}\ns_mov_b32 s{sTb+1}, {t>>32:#x}")
        else: a(f"s_cmp_eq_u32 s{sT}, {g}\ns_cmov_b32 s{sTb}, {t&0xffffffff:#x}\ns_cmov_b32 s{sTb+1}, {t>>32:#x}")
    def load(s):
        sl=s%D
        if s%2==0:
            a(f"s_bfe_u32 s{sT}, s{sTb+(s>>4)}, {0x40000+4*((s>>1)&7):#x}\ns_lshl_b32 s{sWb}, s{sT}, 15\ns_add_u32 s{sWb}, s{sWb}, s{sWo}")
            a(f"s_lshl_b32 s{sT}, s{sT}, 11\ns_add_u32 s{sOb0}, s{sO0}, s{sT}\ns_add_u32 s{sOb1}, s{sO1}, s{sT}")
            if BAR2 and s: a("s_barrier")
        for n in range(2):
            a(f"s_add_u32 m0, s{sLw}, {sl*2048+n*1024}\ns_add_u32 s{sT}, s{sWb}, {(16*(s&1)+8*n)*1024}")
            a(f"buffer_load_dwordx4 v{vDW}, s[{SW}:{SW+3}], s{sT} offen {WOP} lds")
        for rb in range(2): a(f"buffer_load_dwordx4 {vr(vOF+8*sl+4*rb,4)}, v{vOA}, s[{SO}:{SO+3}], s{sOb1 if rb else sOb0} offen offset:{(s&1)*1024} {OLP}")
    for s in range(D): load(s)
    a(f"v_bfe_u32 v{vT0}, v{vL}, 2, 2\nv_lshrrev_b32 v{vT1}, 5, v{vL}\nv_lshl_add_u32 v{vT1}, v{vT1}, 2, v{vT0}\nv_lshlrev_b32 v{vA0}, 7, v{vT1}")
    a(f"v_lshrrev_b32 v{vT0}, 1, v{vT0}\nv_lshl_add_u32 v{vA0}, v{vT0}, 6, v{vA0}\nv_and_b32 v{vT0}, 1, v{vL}\nv_lshl_add_u32 v{vA0}, v{vT0}, 5, v{vA0}")
    a(f"v_bfe_u32 v{vT0}, v{vL}, 4, 1\nv_lshl_add_u32 v{vA0}, v{vT0}, 4, v{vA0}\nv_bfe_u32 v{vT0}, v{vL}, 1, 1\nv_lshl_add_u32 v{vA0}, v{vT0}, 3, v{vA0}")
    a(f"v_add_u32 v{vA0}, s{sLw}, v{vA0}\nv_xor_b32 v{vA1}, 64, v{vA0}")
    def wread(s):
        for nb in range(2):
            for rd in range(2): a(f"ds_read_b64_tr_b16 {vr(vWF+(s&1)*8+nb*4+rd*2,2)}, v{vA1 if nb else vA0} offset:{(s%D)*2048+rd*1024}")
    NS=32
    a(f"s_waitcnt vmcnt({4*(D-1)})"); wread(0)
    for s in range(NS):
        if s+1<NS:
            a(f"s_waitcnt vmcnt({4*(min(NS,s+D)-(s+2))})"); wread(s+1); a("s_waitcnt lgkmcnt(4)")
        else: a("s_waitcnt lgkmcnt(0)")
        for nb in range(2):
            for rb in range(2): mfma(vAcc+16*(2*nb+rb), vWF+(s&1)*8+nb*4, vOF+8*(s%D)+4*rb, "0" if s==0 else vAcc+16*(2*nb+rb))
        if s%2==0: stamp()
        if s+D<NS: load(s+D)
    a(f"v_add_u32 v{vT0}, s{sLw}, v{vOA}\ns_lshl_b32 s{sT}, s{sW}, 11\nv_add_u32 v{vT1}, s{sT}, v{vOA}\nv_add_u32 v{vT2}, 0x10000, v{vT1}\ns_nop 7")
    for p in range(16): a(f"ds_write_b128 v{vT0}, {vr(vAcc+4*p,4)} offset:{p*1024}")
    a("s_waitcnt lgkmcnt(0)"); stamp(); a("s_barrier"); stamp()
    for w in range(8):
        for p in range(2): a(f"ds_read_b128 {vr(vAcc+8*w+4*p,4)}, v{vT1 if w<4 else vT2} offset:{(w&3)*16384+p*1024}")
    a(f"v_and_b32 v{vT0}, 31, v{vL}\nv_lshlrev_b32 v{vT0}, 11, v{vT0}\nv_lshrrev_b32 v{vT3}, 5, v{vL}\nv_lshl_add_u32 v{vT0}, v{vT3}, 5, v{vT0}")
    a(f"s_lshl_b32 s{sT}, s{sRt}, 1\ns_bfe_u32 s{sT2}, s{sW}, 0x10001\ns_add_u32 s{sT}, s{sT}, s{sT2}\ns_lshl_b32 s{sT}, s{sT}, 16")
    a(f"s_lshl_b32 s{sT2}, s{sBr}, 10\ns_add_u32 s{sT}, s{sT}, s{sT2}\ns_lshl_b32 s{sT2}, s{sCt}, 7\ns_add_u32 s{sT}, s{sT}, s{sT2}")
    a(f"s_lshr_b32 s{sT2}, s{sW}, 2\ns_lshl_b32 s{sT2}, s{sT2}, 6\ns_add_u32 s{sT}, s{sT}, s{sT2}\ns_and_b32 s{sT2}, s{sW}, 1\ns_lshl_b32 s{sT2}, s{sT2}, 4\ns_add_u32 s{sT}, s{sT}, s{sT2}")
    for w in range(1,8):
        a(f"s_waitcnt lgkmcnt({14-2*w})")
        for i in range(8): a(f"v_add_f32 v{vAcc+i}, v{vAcc+i}, v{vAcc+8*w+i}")
    for i in range(4): a(f"v_cvt_pk_bf16_f32 v{vWF+i}, v{vAcc+2*i}, v{vAcc+2*i+1}")
    a(f"buffer_store_dwordx4 {vr(vWF,4)}, v{vT0}, s[{SD}:{SD+3}], s{sT} offen {OUTP}")
    a("s_waitcnt vmcnt(0)"); stamp_out(1,vT0,sW)
    a("s_waitcnt vmcnt(0)\nL2_end:\ns_endpgm")
kernel1(); kernel2()
a('.section .rodata,"a"\n.p2align 6'); a(desc(K1,256)); a(".p2align 6"); a(desc(K2,160))
print("\n".join(o))
```

```python
import sys, os
NAME="concat_heads__mha_block_cached__gqa_block_cached__near_ridge"
OPT=dict(a.split("=") for a in sys.argv[1:] if "=" in a)
def opt(k,d): return OPT.get(k,d)
KVP=opt("kv","nt"); WP=opt("w",""); XP=opt("x",""); OSP=opt("os",""); OLP=opt("ol",""); WOP=opt("wo",""); OUTP=opt("out","")
o=[]
def a(s): o.append(s)
def vr(b,n): return f"v[{b}:{b+n-1}]"
def desc(name,vg):
    return f'''.amdhsa_kernel {name}
  .amdhsa_next_free_vgpr {vg}
  .amdhsa_next_free_sgpr 102
  .amdhsa_accum_offset {vg}
  .amdhsa_group_segment_fixed_size 0
  .amdhsa_kernarg_size 104
  .amdhsa_user_sgpr_count 2
  .amdhsa_user_sgpr_kernarg_segment_ptr 1
  .amdhsa_system_sgpr_workgroup_id_x 1
.end_amdhsa_kernel'''
def head(name): a(f".globl {name}\n.p2align 8\n.type {name},@function\n{name}:")
def srd(d,a_lo,b_lo,size):
    if b_lo is None: a(f"s_mov_b32 s{d}, s{a_lo}\ns_mov_b32 s{d+1}, s{a_lo+1}")
    else: a(f"s_cselect_b32 s{d}, s{b_lo}, s{a_lo}\ns_cselect_b32 s{d+1}, s{b_lo+1}, s{a_lo+1}")
    a(f"s_mov_b32 s{d+2}, {size:#x}\ns_mov_b32 s{d+3}, 0x00020000")
def mfma(d,x,y,c): a(f"v_mfma_f32_32x32x16_bf16 {vr(d,16)}, {vr(x,4)}, {vr(y,4)}, {c if isinstance(c,str) else vr(c,16)}")
ST=opt("st","0")=="1"
def stamp(real=False):
    if not ST: return
    a(f"{'s_memrealtime' if real else 's_memtime'} s[96:97]\ns_waitcnt lgkmcnt(0)\ns_mov_b32 m0, s99\ns_add_u32 s99, s99, 1\nv_writelane_b32 v{STV[0]}, s96, m0")
STV=[0]
def stamp_init(v):
    STV[0]=v
    if ST: a(f"s_mov_b32 s99, 0\nv_mov_b32 v{v}, 0"); stamp(True); stamp()
def stamp_out(k,vt,sw):
    if not ST: return
    stamp(); stamp(True)
    a(f"s_mov_b32 s92, s28\ns_mov_b32 s93, s29\ns_mov_b32 s94, 0x10000000\ns_mov_b32 s95, 0x20000")
    a(f"s_lshl_b32 s96, s2, 3\ns_add_u32 s96, s96, s{sw}\ns_lshl_b32 s96, s96, 8\ns_add_u32 s96, s96, {0x2000000+k*0x80000}")
    a(f"v_and_b32 v{vt}, 63, v0\nv_lshlrev_b32 v{vt}, 2, v{vt}\nbuffer_store_dword v{STV[0]}, v{vt}, s[92:95], s96 offen\ns_waitcnt vmcnt(0)")
K1=NAME+"_kernel"; K2=NAME+"_oproj_kernel"
a(open("cdna_kernels/"+NAME+".s.ref").read().split("; Override")[0].rstrip())
a(f"; @launch kernel={K1} grid=(256,1,1) block=(512,1,1) lds=163840")
a(f"; @launch kernel={K2} grid=(256,1,1) block=(512,1,1) lds=131072")
a('.amdgcn_target "amdgcn-amd-amdhsa--gfx950"\n.text')
def ptrs():
    if opt("bad","0")=="1": a("s_and_b32 s3, s2, 7\ns_lshl_b32 s3, s3, 5\ns_lshr_b32 s2, s2, 3\ns_or_b32 s2, s2, s3")
    a("s_load_dwordx16 s[4:19], s[0:1], 0\ns_load_dwordx8 s[20:27], s[0:1], 64\ns_load_dwordx2 s[28:29], s[0:1], 96")
class Cnt:
    def __init__(s,name,mx): s.q=[]; s.name=name; s.mx=mx; s.done=0
    def issue(s,tag): s.q.append(tag)
    def wait(s,tags):
        idx=[i for i,t in enumerate(s.q) if t in tags]
        if not idx or idx[-1]<s.done: return
        n=len(s.q)-1-idx[-1]
        if n>s.mx: n=s.mx
        s.done=len(s.q)-n
        a(f"s_waitcnt {s.name}({n})")
def kernel1():
    head(K1)
    a("s_cmp_ge_u32 s2, 256\ns_cbranch_scc1 L1_end")
    stamp_init(19)
    if opt("dbg","0")=="1": a("s_memtime s[84:85]\ns_memrealtime s[86:87]")
    ptrs()
    SX,SK,SV,SW,SO=32,36,40,44,48
    sW,sHalf,sQb,sHead,sB,sBr=52,53,54,55,56,57
    sKV,sT,sT2,sC,sLw,sLw2,sJ0,sAny=58,59,60,64,65,66,67,78
    sEv,sOd,sLo,sHi=68,70,72,74
    sXo,sWo=76,77
    vL,vDK,vDV,vDW,vX,vK0,vV0,vW0=1,2,3,4,5,6,7,8
    vM,vLs,vLs2,vAl,vT0,vT1,vT2,vT3=9,10,11,12,13,14,15,16
    vVA=20; vKA=24
    vQ=32; vO=64; vS=128; vE=160; vP=192; vF=208
    vXF=128; vXT=192
    PD=int(opt("pd","6")); BAR=15-PD
    vm=Cnt("vmcnt",63); lg=Cnt("lgkmcnt",15)
    a(f"v_lshrrev_b32 v{vT0}, 6, v0\nv_and_b32 v{vL}, 63, v0\nv_readfirstlane_b32 s{sW}, v{vT0}")
    a(f"s_and_b32 s{sBr}, s2, 1\ns_lshr_b32 s{sT}, s2, 1\ns_and_b32 s{sT}, s{sT}, 3\ns_lshl_b32 s{sT}, s{sT}, 3")
    a(f"s_lshr_b32 s{sT2}, s2, 3\ns_and_b32 s{sT2}, s{sT2}, 7\ns_add_u32 s{sHead}, s{sT}, s{sT2}")
    a(f"s_lshr_b32 s{sHalf}, s{sW}, 2\ns_and_b32 s{sQb}, s{sW}, 3\ns_lshr_b32 s{sB}, s2, 6\ns_lshl_b32 s{sB}, s{sB}, 1")
    ROT=opt("rot","0")
    def order(g):
        if ROT=="0": return list(range(8))
        if ROT=="2": return [g,4+g]+[x for k in (1,2,3) for x in ((g+k)&3,4+((g+k)&3))]
        if ROT=="3": return [(g+k)&3 for k in range(4)]+[4+((g+k)&3) for k in range(4)]
        lead={0:g,1+g:4+g}; rest=[(g+k)&3 for k in (1,2,3)]+[b for b in range(4,8) if b!=4+g]
        return [lead[i] if i in lead else rest.pop(0) for i in range(8)]
    a(f"s_lshr_b32 s{sT}, s2, 6\ns_add_u32 s{sT}, s{sT}, s{sT2}\ns_and_b32 s{sT}, s{sT}, 3")
    for g in range(4):
        t=sum(b<<(4*i) for i,b in enumerate(order(g))); assert sorted(order(g))==list(range(8))
        a(f"s_mov_b32 s{sJ0}, {t:#x}" if g==0 else f"s_cmp_eq_u32 s{sT}, {g}\ns_cmov_b32 s{sJ0}, {t:#x}")
    a(f"s_add_u32 s{sB}, s{sB}, s{sHalf}")
    a(f"v_lshrrev_b32 v{vT0}, 4, v{vL}\nv_and_b32 v{vT1}, 15, v{vL}\nv_lshlrev_b32 v{vT2}, 2, v{vT0}\nv_xor_b32 v{vT1}, v{vT1}, v{vT2}")
    a(f"v_lshlrev_b32 v{vT2}, 4, v{vT1}\nv_lshl_add_u32 v{vDW}, v{vT0}, 13, v{vT2}\nv_lshl_add_u32 v{vDV}, v{vT0}, 8, v{vT2}")
    a(f"v_xor_b32 v{vT1}, s{sQb}, v{vT1}\nv_lshlrev_b32 v{vT2}, 4, v{vT1}\nv_lshl_add_u32 v{vDK}, v{vT0}, 8, v{vT2}")
    a(f"v_bfe_u32 v{vT0}, v{vL}, 2, 3\nv_lshlrev_b32 v{vT0}, 12, v{vT0}\nv_lshrrev_b32 v{vT1}, 5, v{vL}\nv_lshlrev_b32 v{vT1}, 6, v{vT1}")
    a(f"v_and_b32 v{vT2}, 3, v{vL}\nv_lshlrev_b32 v{vT2}, 4, v{vT2}\nv_add3_u32 v{vX}, v{vT0}, v{vT1}, v{vT2}")
    a(f"s_lshl_b32 s{sXo}, s{sB}, 2\ns_add_u32 s{sXo}, s{sXo}, s{sQb}\ns_lshl_b32 s{sXo}, s{sXo}, 15")
    a(f"s_lshl_b32 s{sWo}, s{sW}, 16\ns_lshl_b32 s{sT}, s{sHead}, 8\ns_add_u32 s{sWo}, s{sWo}, s{sT}")
    a(f"s_lshl_b32 s{sKV}, s{sB}, 5\ns_add_u32 s{sKV}, s{sKV}, s{sHead}\ns_lshl_b32 s{sKV}, s{sKV}, 17\ns_lshl_b32 s{sT}, s{sQb}, 12\ns_add_u32 s{sKV}, s{sKV}, s{sT}")
    a(f"s_lshl_b32 s{sLw}, s{sW}, 12\ns_lshl_b32 s{sLw2}, s{sW}, 11")
    a("s_waitcnt lgkmcnt(0)")
    a(f"s_cmp_eq_u32 s{sBr}, 1")
    srd(SW,10,20,0 if opt('nowq','0')=='1' else 0x400000); srd(SX,4,14,0 if opt('nox','0')=='1' else 0x100000)
    ksz=0 if opt('nokv','0')=='1' else 0x2000000
    srd(80,12,22,0x400000); srd(SK,6,16,ksz); srd(SV,8,18,ksz); srd(SO,28,None,0x1000000)
    def ld_w(j):
        def f(n):
            if n==0: a(f"s_bfe_u32 s{sT2}, s{sJ0}, {0x40000+4*j:#x}\ns_lshl_b32 s{sT2}, s{sT2}, 19\ns_add_u32 s{sT2}, s{sT2}, s{sWo}")
            a(f"s_add_u32 m0, s{sLw2}, {(j&3)*16384+n*1024}")
            a(f"s_add_u32 s{sT2}, s{sT2}, {n*32768}")
            a(f"buffer_load_dwordx4 v{vDW}, s[{SW}:{SW+3}], s{sT2} offen {WP} lds"); vm.issue(("W",j))
        return [lambda n=n:f(n) for n in range(2)]
    def ld_x(j):
        def f(i):
            if i==0: a(f"s_bfe_u32 s{sT2}, s{sJ0}, {0x40000+4*j:#x}\ns_lshl_b32 s{sT2}, s{sT2}, 7\ns_add_u32 s{sT2}, s{sT2}, s{sXo}")
            a(f"buffer_load_dwordx4 {vr(vXF+16*(j&3)+4*i,4)}, v{vX}, s[{SX}:{SX+3}], s{sT2} offen offset:{i*1024} {XP}"); vm.issue(("X",j))
        return [lambda i=i:f(i) for i in range(4)]
    def pf_wo():
        a(f"s_lshr_b32 s{sT2}, s2, 1\ns_lshl_b32 s{sT2}, s{sT2}, 15\ns_add_u32 s{sT2}, s{sT2}, s{sLw}\nv_lshlrev_b32 v17, 6, v{vL}")
        a(f"buffer_load_dword v18, v17, s[80:83], s{sT2} offen"); vm.issue("pf")
    seq=[("K",0)]
    for t in range(7): seq+=[("K",t+1),("V",t)]
    seq+=[("V",7)]
    slot=lambda n:((n+2)%5)*32768
    def ld_kv(n,p):
        ty,t=seq[n]
        def f():
            a(f"s_add_u32 m0, s{sLw}, {slot(n)}\ns_add_u32 s{sT}, s{sKV}, {t*16384}")
            r,v=(SK,vDK) if ty=="K" else (SV,vDV)
            a(f"buffer_load_dwordx4 v{v}, s[{r}:{r+3}], s{sT} offen offset:{p*1024} {KVP} lds"); vm.issue(("KV",n))
        return f
    KS=[int(c) for c in opt("ks","22222222")]; kq=[(n,p) for n in range(4) for p in range(4)]
    assert sum(KS)==16 and sum(KS[:6])<=12
    def kv_early(pos): return [ld_kv(*kq.pop(0)) for _ in range(KS[pos])]
    UP=int(opt("up","2"))
    w1=ld_w(1)
    for f in ld_w(0)+ld_x(0)+ld_x(1)+w1+(ld_w(2)+ld_x(2) if UP==3 else []): f()
    if opt("pfw","-")=="p": pf_wo()
    a(f"v_bfe_u32 v{vT0}, v{vL}, 2, 2\nv_lshrrev_b32 v{vT1}, 5, v{vL}\nv_bfe_u32 v{vT2}, v{vL}, 4, 1")
    a(f"v_mul_u32_u24 v{vT3}, 320, v{vT0}\nv_lshl_add_u32 v{vT3}, v{vT2}, 5, v{vT3}")
    a(f"v_lshl_add_u32 v{vVA}, v{vT1}, 13, v{vT3}\nv_and_b32 v{vT2}, 1, v{vL}\nv_lshl_add_u32 v{vVA}, v{vT2}, 4, v{vVA}\nv_bfe_u32 v{vT2}, v{vL}, 1, 1\nv_lshl_add_u32 v{vVA}, v{vT2}, 3, v{vVA}")
    for db in range(1,4): a(f"v_xor_b32 v{vVA+db}, {db*64}, v{vVA}")
    a(f"v_lshl_add_u32 v{vV0}, v{vT1}, 12, v{vT3}\nv_and_b32 v{vT2}, 3, v{vL}\nv_lshl_add_u32 v{vV0}, v{vT2}, 3, v{vV0}")
    a(f"s_lshl_b32 s{sT}, s{sHalf}, 14\nv_add_u32 v{vV0}, s{sT}, v{vV0}")
    a(f"v_lshlrev_b32 v{vK0}, 12, v{vT0}\nv_bfe_u32 v{vT3}, v{vL}, 4, 1\nv_lshl_add_u32 v{vK0}, v{vT3}, 10, v{vK0}\nv_lshl_add_u32 v{vK0}, v{vT2}, 8, v{vK0}")
    a(f"v_lshl_add_u32 v{vT3}, v{vT2}, 2, v{vT0}\nv_xor_b32 v{vT3}, v{vT3}, v{vT1}\nv_lshl_add_u32 v{vK0}, v{vT3}, 4, v{vK0}\nv_add_u32 v{vK0}, s{sT}, v{vK0}")
    for r,v in ((sEv,0x55555555),(sOd,0xaaaaaaaa),(sLo,0x33333333),(sHi,0xcccccccc)): a(f"s_mov_b32 s{r}, {v:#x}\ns_mov_b32 s{r+1}, {v:#x}")
    a(f"s_mov_b32 s{sC}, 0x3e0293ee")
    if opt("prio","0")=="1": a(f"s_cmp_eq_u32 s{sHalf}, 0\ns_cbranch_scc1 L1_noprio\ns_setprio 1\nL1_noprio:")
    def tr_ops(j):
        X=vXF+16*(j&3); r=[]
        for src,dst,bit,mk,mo,perm in ((X,vXT,1,sEv,sOd,"[1,0,3,2]"),(vXT,X,2,sLo,sHi,"[2,3,0,1]")):
            for m,want in ((mk,0),(mo,bit)):
                pre=f"s_mov_b64 vcc, s[{m}:{m+1}]\n"
                for i in range(4):
                    if (i&bit)!=want: continue
                    for d in range(4):
                        r.append(pre+f"v_cndmask_b32_dpp v{dst+4*i+d}, v{src+4*(i^bit)+d}, v{src+4*i+d}, vcc quad_perm:{perm} row_mask:0xf bank_mask:0xf"); pre=""
        return r
    segs=[("W",j) for j in range(8)]+[("KV",n) for n in range(16)]
    abase={"K":None,"V":None}
    def set_addr(sg):
        if sg[0]=="W": return []
        ty,t=seq[sg[1]]; b=slot(sg[1])&~0xffff
        if abase[ty]==b: return []
        abase[ty]=b
        if ty=="K": return [f"v_add_u32 v{vKA}, {b}, v{vK0}"]+[f"v_xor_b32 v{vKA+s}, {s<<5}, v{vKA}" for s in range(1,8)]
        return [f"v_add_u32 v{vVA}, {b}, v{vV0}"]+[f"v_xor_b32 v{vVA+d}, {d*64}, v{vVA}" for d in range(1,4)]
    vNM=240; Sb=lambda t:vS+32*(t&1); Pb=lambda t:vNM if t==7 else vP
    def idx(sg,i): return (i&3,i>>2) if sg in (("W",7),("KV",15)) else (i>>2,i&3)
    def rd(sg,i):
        F=vF+4*(i&7); ks,db=idx(sg,i)
        if sg[0]=="W":
            for r in range(2): a(f"ds_read_b64_tr_b16 {vr(F+2*r,2)}, v{vVA+db} offset:{(sg[1]&3)*16384+(8*ks+4*r)*256}"); lg.issue((sg,i))
            return
        ty,t=seq[sg[1]]; off=slot(sg[1])&0xffff
        if ty=="K": a(f"ds_read_b128 {vr(F,4)}, v{vKA+(i&7)} offset:{off+(i>>3)*2048}"); lg.issue((sg,i))
        else:
            for r in range(2): a(f"ds_read_b64_tr_b16 {vr(F+2*r,2)}, v{vVA+db} offset:{off+(32*r+4*ks)*256}"); lg.issue((sg,i))
    def mm(sg,i):
        F=vF+4*(i&7); ks,db=idx(sg,i)
        if sg[0]=="W": mfma(vO+16*db,F,vXF+16*(sg[1]&3)+4*ks,"0" if sg[1]==0 and ks==0 else vO+16*db); return
        ty,t=seq[sg[1]]
        if ty=="K": mfma(Sb(t)+16*(i>>3),F,vQ+4*(i&7),("0" if t==0 else vNM) if (i&7)==0 else Sb(t)+16*(i>>3))
        else: mfma(vO+16*db,F,Pb(t)+4*ks,"0" if t==0 and ks==0 else vO+16*db)
    def max_a(S): return [f"v_max3_f32 v{vT0}, v{S}, v{S+1}, v{S+2}"]+[f"v_max3_f32 v{vT0}, v{S+i}, v{S+i+1}, v{vT0}" for i in range(3,15,2)]
    def max_b(S): return [f"v_max3_f32 v{vT1}, v{S+16}, v{S+17}, v{S+15}"]+[f"v_max3_f32 v{vT1}, v{S+i}, v{S+i+1}, v{vT1}" for i in range(18,32,2)]+[f"v_max_f32 v{vT0}, v{vT0}, v{vT1}"]
    xh=f"v_mov_b32 v{vT1}, v{vT0}\ns_nop 1\nv_permlane32_swap_b32 v{vT0}, v{vT1}\ns_nop 1\nv_max_f32 v{vT0}, v{vT0}, v{vT1}"
    def check(t):
        S=Sb(t); r=f"v_cmp_lt_f32 vcc, 0x41000000, v{vT0}\ns_nop 0\ns_cbranch_vccz L1_ok{t}\n{xh}\nv_cmp_lt_f32 vcc, 0x41000000, v{vT0}\ns_nop 1\n"
        r+=f"v_cndmask_b32 v{vT0}, 0, v{vT0}, vcc\nv_exp_f32 v{vAl}, -v{vT0}\n"
        r+="".join(f"v_sub_f32 v{S+i}, v{S+i}, v{vT0}\n" for i in range(32))+"".join(f"v_sub_f32 v{vNM+i}, v{vNM+i}, v{vT0}\n" for i in range(16))
        return r+f"v_mul_f32 v{vLs}, v{vAl}, v{vLs}\nv_mul_f32 v{vLs2}, v{vAl}, v{vLs2}\nL1_ok{t}:"
    NE=int(opt("ne","16"))
    def cvt(t,i): return f"v_cvt_pk_bf16_f32 v{Pb(t)+i//2}, v{Sb(t)+i}, v{Sb(t)+i+1}"
    def sm(t,lo,hi,pack,extra=[]):
        S=Sb(t); r=[]; extra=list(extra)
        for i in range(lo,hi+2,2):
            if i<hi:
                if t==0: r+=[f"v_sub_f32 v{S+k}, v{S+k}, v{vT0}" for k in (i,i+1)]
                r+=[f"v_exp_f32 v{S+k}, v{S+k}" for k in (i,i+1)]
            if extra: r.append(extra.pop(0))
            if i>lo:
                p=i-2
                if t==0 and p==0: r+=[f"v_mov_b32 v{vLs}, v{S}",f"v_mov_b32 v{vLs2}, v{S+1}"]
                else: r+=[f"v_add_f32 v{vLs}, v{vLs}, v{S+p}",f"v_add_f32 v{vLs2}, v{vLs2}, v{S+p+1}"]
                if pack: r.append(cvt(t,p))
        return r+extra
    def qcv(db): return [x for i in range(8) for x in (f"v_mul_f32 v{vO+16*db+2*i}, s{sC}, v{vO+16*db+2*i}",f"v_mul_f32 v{vO+16*db+2*i+1}, s{sC}, v{vO+16*db+2*i+1}")]+[f"v_cvt_pk_bf16_f32 v{vQ+8*db+i}, v{vO+16*db+2*i}, v{vO+16*db+2*i+1}" for i in range(8)]
    def ofin(db):
        r=[]
        for f in (2*db,2*db+1):
            r+=[f"v_mul_f32 v{vO+8*f+i}, v{vT0}, v{vO+8*f+i}" for i in range(8)]+[f"v_cvt_pk_bf16_f32 v{vS+4*f+i}, v{vO+8*f+2*i}, v{vO+8*f+2*i+1}" for i in range(4)]
            r.append(f"buffer_store_dwordx4 {vr(vS+4*f,4)}, v{vT3}, s[{SO}:{SO+3}], s{sT if f<4 else sT2} offen offset:{(f&3)*1024} {OSP}")
        return r
    lsum=[f"v_add_f32 v{vLs}, v{vLs}, v{vLs2}",f"v_lshlrev_b32 v{vT3}, 4, v{vL}",f"v_mov_b32 v{vT1}, v{vLs}\ns_nop 1\nv_permlane32_swap_b32 v{vLs}, v{vT1}\ns_nop 1\nv_add_f32 v{vLs}, v{vLs}, v{vT1}",f"v_rcp_f32 v{vT0}, v{vLs}",
      f"s_lshl_b32 s{sT}, s{sBr}, 3\ns_add_u32 s{sT}, s{sT}, s{sB}\ns_lshl_b32 s{sT}, s{sT}, 2\ns_add_u32 s{sT}, s{sT}, s{sQb}\ns_lshl_b32 s{sT}, s{sT}, 5\ns_add_u32 s{sT}, s{sT}, s{sHead}\ns_lshl_b32 s{sT}, s{sT}, 13\ns_add_u32 s{sT2}, s{sT}, 4096"]
    cost=lambda s: 2 if s.startswith("v_exp") else 1
    at=lambda e,l:[(e,x) for x in l]
    LSP=int(opt("lsp","4")); pend={}
    vm.wait([("W",0),("X",0)]); a("s_barrier"); stamp()
    for i in range(PD): rd(segs[0],i)
    l0=ld_w(2)+ld_x(2) if UP==2 else []
    if opt("pfw","-")=="q": l0.append(pf_wo)
    for k,s_ in enumerate(tr_ops(0)):
        a(s_)
        if k%4==0 and l0: l0.pop(0)()
    a("s_nop 1")
    for si,sg in enumerate(segs):
        nxt=segs[si+1] if si+1<len(segs) else None
        fill=[]; start=0; last=14; ty=None
        def sched(l,g0,sp):
            for k,f in enumerate(l): pend.setdefault(16*si+g0+int(k*sp),[]).append(f)
        if sg[0]=="W":
            j=sg[1]
            if j<7: vm.wait([("X",j+1)]); fill=at(0,tr_ops(j+1))
            else: fill=at(5,qcv(0))+at(9,qcv(1))+at(13,qcv(2)); start=5; last=15
            if j+3<8: sched(ld_x(j+3),0,2)
            l=(ld_w(j+3) if j+3<8 else [])+kv_early(j)+([pf_wo] if str(j)==opt("pfw","-") else [])
            if l: sched(l,BAR,(16-BAR)/len(l))
        else:
            n=sg[1]; ty,t=seq[n]
            if n+4<16: sched([ld_kv(n+4,p) for p in range(4)],BAR,LSP)
            if opt("pfw","-")=="k%d"%n: sched([pf_wo],BAR,1)
            if n==0: fill=at(1,qcv(3))+at(10,max_a(Sb(0))); start=1; last=4
            elif n==1: fill=at(0,sm(0,0,32,True))
            elif ty=="K": fill=at(0,sm(t-1,NE,32,True,[cvt(t-1,i) for i in range(0,NE,2)]))
            elif t<7:
                fill=at(0,max_a(Sb(t+1)))+at(2,max_b(Sb(t+1))+[check(t+1)]+(sm(t+1,0,NE,False) if t<6 else sm(7,0,32,True))); last=15
            else: fill=at(0,lsum)+at(5,ofin(0))+at(9,ofin(1))+at(13,ofin(2)); last=15
        tot=sum(cost(x) for e,x in fill); acc=0
        for i in range(16):
            lg.wait([(sg,i)]); mm(sg,i)
            if i+PD<16: rd(sg,i+PD)
            elif nxt: rd(nxt,i+PD-16)
            if i==BAR and nxt:
                for s_ in set_addr(nxt): a(s_)
                vm.wait([nxt]); a("s_barrier")
            for f in pend.pop(16*si+i,[]): f()
            while fill and i>=max(start,fill[0][0]) and acc<tot*(i+1-start)/(last+1-start):
                x=fill.pop(0)[1]; acc+=cost(x); a(x)
        assert not fill
        if sg==("KV",0):
            a("s_nop 7\ns_nop 3")
            for s_ in max_b(Sb(0))+[xh]+[f"v_sub_f32 v{vNM+i}, 0, v{vT0}" for i in range(16)]+["s_nop 1"]: a(s_)
        if ty=="V" and t<7:
            a(f"s_cbranch_vccz L1_nr{t}\ns_nop 7\ns_nop 3")
            for i in range(64): a(f"v_mul_f32 v{vO+i}, v{vAl}, v{vO+i}")
            a(f"L1_nr{t}:")
            if t==6: a("s_nop 1")
        if ST: lg.done=len(lg.q); stamp()
    assert not pend
    a("s_nop 7")
    for s_ in ofin(3): a(s_)
    stamp(); a("s_waitcnt vmcnt(0)"); stamp_out(0,vT0,sW)
    if opt("dbg","0")=="1":
        a("s_memtime s[88:89]\ns_memrealtime s[90:91]\ns_waitcnt lgkmcnt(0)\ns_sub_u32 s88, s88, s84\ns_sub_u32 s90, s90, s86\ns_and_b32 s91, s2, 31\ns_cmp_lg_u32 s91, 0\ns_cbranch_scc1 L1_end")
        a("s_mov_b32 s92, s26\ns_mov_b32 s93, s27\ns_mov_b32 s94, 256\ns_mov_b32 s95, 0x20000\ns_lshr_b32 s91, s2, 2\nv_mov_b32 v2, s88\nv_mov_b32 v3, s90\nv_mov_b32 v4, 0\nbuffer_store_dwordx2 v[2:3], v4, s[92:95], s91 offen\ns_waitcnt vmcnt(0)")
    a("L1_end:\ns_endpgm")
def kernel2():
    head(K2)
    a("s_cmp_ge_u32 s2, 256\ns_cbranch_scc1 L2_end")
    stamp_init(10)
    ptrs()
    SW,SO,SD=32,36,40
    sW,sBr,sRt,sCt,sT,sT2,sO0,sO1,sWo,sLw=52,53,54,55,56,57,58,59,60,61
    vL,vOA,vDW,vA0,vA1,vT0,vT1,vT2,vT3=1,2,3,4,5,6,7,8,9
    vAcc=12; vWF=76; vOF=92; D=int(opt("d","8")); BAR2=opt("bar","0")=="1"; ORD=opt("ord","0")
    sTb,sWb,sOb0,sOb1=62,64,65,66
    def order(g):
        if ORD=="0": return list(range(16))
        if ORD=="2": return [(i&8)|((i+2*g)&7) for i in range(16)]
        if ORD=="3": return [(i&12)|((i+g)&3) for i in range(16)]
        lead={0:g}; lead.update({1+g+4*k:4+g+4*k for k in range(3)}); rest=[b for b in range(16) if b%4!=g]
        if ORD=="4": rest[0:3]=[(g+k)&3 for k in (1,2,3)]
        return [lead[i] if i in lead else rest.pop(0) for i in range(16)]
    a(f"v_lshrrev_b32 v{vT0}, 6, v0\nv_and_b32 v{vL}, 63, v0\nv_readfirstlane_b32 s{sW}, v{vT0}")
    a(f"s_and_b32 s{sBr}, s2, 1\ns_lshr_b32 s{sT}, s2, 1\ns_and_b32 s{sT}, s{sT}, 3\ns_lshl_b32 s{sT}, s{sT}, 2\ns_lshr_b32 s{sT2}, s2, 3\ns_and_b32 s{sT2}, s{sT2}, 3\ns_add_u32 s{sRt}, s{sT}, s{sT2}\ns_lshr_b32 s{sCt}, s2, 5")
    a(f"v_lshlrev_b32 v{vOA}, 4, v{vL}")
    a(f"v_lshrrev_b32 v{vT0}, 3, v{vL}\nv_and_b32 v{vT1}, 7, v{vL}\nv_bfe_u32 v{vT2}, v{vL}, 4, 1\nv_lshlrev_b32 v{vT2}, 2, v{vT2}\nv_xor_b32 v{vT1}, v{vT1}, v{vT2}\nv_lshlrev_b32 v{vT1}, 4, v{vT1}\nv_lshl_add_u32 v{vDW}, v{vT0}, 10, v{vT1}")
    a("s_waitcnt lgkmcnt(0)")
    a(f"s_cmp_eq_u32 s{sBr}, 1")
    srd(SW,12,22,0 if opt('nowo','0')=='1' else 0x400000); srd(SO,28,None,0 if opt('noo','0')=='1' else 0x1000000); srd(SD,24,None,0x200000)
    a(f"s_lshl_b32 s{sO0}, s{sBr}, 4\ns_add_u32 s{sO0}, s{sO0}, s{sRt}\ns_lshl_b32 s{sO0}, s{sO0}, 19\ns_lshl_b32 s{sT}, s{sW}, 15\ns_add_u32 s{sO0}, s{sO0}, s{sT}\ns_add_u32 s{sO1}, s{sO0}, 0x40000")
    a(f"s_lshl_b32 s{sWo}, s{sW}, 19\ns_lshl_b32 s{sT}, s{sCt}, 7\ns_add_u32 s{sWo}, s{sWo}, s{sT}\ns_lshl_b32 s{sLw}, s{sW}, 14")
    a(f"s_add_u32 s{sT}, s{sRt}, s{sCt}\ns_and_b32 s{sT}, s{sT}, 3")
    for g in range(4):
        t=sum(b<<(4*i) for i,b in enumerate(order(g))); assert sorted(order(g))==list(range(16))
        if g==0: a(f"s_mov_b32 s{sTb}, {t&0xffffffff:#x}\ns_mov_b32 s{sTb+1}, {t>>32:#x}")
        else: a(f"s_cmp_eq_u32 s{sT}, {g}\ns_cmov_b32 s{sTb}, {t&0xffffffff:#x}\ns_cmov_b32 s{sTb+1}, {t>>32:#x}")
    def load(s):
        sl=s%D
        if s%2==0:
            a(f"s_bfe_u32 s{sT}, s{sTb+(s>>4)}, {0x40000+4*((s>>1)&7):#x}\ns_lshl_b32 s{sWb}, s{sT}, 15\ns_add_u32 s{sWb}, s{sWb}, s{sWo}")
            a(f"s_lshl_b32 s{sT}, s{sT}, 11\ns_add_u32 s{sOb0}, s{sO0}, s{sT}\ns_add_u32 s{sOb1}, s{sO1}, s{sT}")
            if BAR2 and s: a("s_barrier")
        for n in range(2):
            a(f"s_add_u32 m0, s{sLw}, {sl*2048+n*1024}\ns_add_u32 s{sT}, s{sWb}, {(16*(s&1)+8*n)*1024}")
            a(f"buffer_load_dwordx4 v{vDW}, s[{SW}:{SW+3}], s{sT} offen {WOP} lds")
        for rb in range(2): a(f"buffer_load_dwordx4 {vr(vOF+8*sl+4*rb,4)}, v{vOA}, s[{SO}:{SO+3}], s{sOb1 if rb else sOb0} offen offset:{(s&1)*1024} {OLP}")
    for s in range(D): load(s)
    a(f"v_bfe_u32 v{vT0}, v{vL}, 2, 2\nv_lshrrev_b32 v{vT1}, 5, v{vL}\nv_lshl_add_u32 v{vT1}, v{vT1}, 2, v{vT0}\nv_lshlrev_b32 v{vA0}, 7, v{vT1}")
    a(f"v_lshrrev_b32 v{vT0}, 1, v{vT0}\nv_lshl_add_u32 v{vA0}, v{vT0}, 6, v{vA0}\nv_and_b32 v{vT0}, 1, v{vL}\nv_lshl_add_u32 v{vA0}, v{vT0}, 5, v{vA0}")
    a(f"v_bfe_u32 v{vT0}, v{vL}, 4, 1\nv_lshl_add_u32 v{vA0}, v{vT0}, 4, v{vA0}\nv_bfe_u32 v{vT0}, v{vL}, 1, 1\nv_lshl_add_u32 v{vA0}, v{vT0}, 3, v{vA0}")
    a(f"v_add_u32 v{vA0}, s{sLw}, v{vA0}\nv_xor_b32 v{vA1}, 64, v{vA0}")
    def wread(s):
        for nb in range(2):
            for rd in range(2): a(f"ds_read_b64_tr_b16 {vr(vWF+(s&1)*8+nb*4+rd*2,2)}, v{vA1 if nb else vA0} offset:{(s%D)*2048+rd*1024}")
    NS=32
    a(f"s_waitcnt vmcnt({4*(D-1)})"); wread(0)
    for s in range(NS):
        if s+1<NS:
            a(f"s_waitcnt vmcnt({4*(min(NS,s+D)-(s+2))})"); wread(s+1); a("s_waitcnt lgkmcnt(4)")
        else: a("s_waitcnt lgkmcnt(0)")
        for nb in range(2):
            for rb in range(2): mfma(vAcc+16*(2*nb+rb), vWF+(s&1)*8+nb*4, vOF+8*(s%D)+4*rb, "0" if s==0 else vAcc+16*(2*nb+rb))
        if s%2==0: stamp()
        if s+D<NS: load(s+D)
    a(f"v_add_u32 v{vT0}, s{sLw}, v{vOA}\ns_lshl_b32 s{sT}, s{sW}, 11\nv_add_u32 v{vT1}, s{sT}, v{vOA}\nv_add_u32 v{vT2}, 0x10000, v{vT1}\ns_nop 7")
    for p in range(16): a(f"ds_write_b128 v{vT0}, {vr(vAcc+4*p,4)} offset:{p*1024}")
    a("s_waitcnt lgkmcnt(0)"); stamp(); a("s_barrier"); stamp()
    for w in range(8):
        for p in range(2): a(f"ds_read_b128 {vr(vAcc+8*w+4*p,4)}, v{vT1 if w<4 else vT2} offset:{(w&3)*16384+p*1024}")
    a(f"v_and_b32 v{vT0}, 31, v{vL}\nv_lshlrev_b32 v{vT0}, 11, v{vT0}\nv_lshrrev_b32 v{vT3}, 5, v{vL}\nv_lshl_add_u32 v{vT0}, v{vT3}, 5, v{vT0}")
    a(f"s_lshl_b32 s{sT}, s{sRt}, 1\ns_bfe_u32 s{sT2}, s{sW}, 0x10001\ns_add_u32 s{sT}, s{sT}, s{sT2}\ns_lshl_b32 s{sT}, s{sT}, 16")
    a(f"s_lshl_b32 s{sT2}, s{sBr}, 10\ns_add_u32 s{sT}, s{sT}, s{sT2}\ns_lshl_b32 s{sT2}, s{sCt}, 7\ns_add_u32 s{sT}, s{sT}, s{sT2}")
    a(f"s_lshr_b32 s{sT2}, s{sW}, 2\ns_lshl_b32 s{sT2}, s{sT2}, 6\ns_add_u32 s{sT}, s{sT}, s{sT2}\ns_and_b32 s{sT2}, s{sW}, 1\ns_lshl_b32 s{sT2}, s{sT2}, 4\ns_add_u32 s{sT}, s{sT}, s{sT2}")
    for w in range(1,8):
        a(f"s_waitcnt lgkmcnt({14-2*w})")
        for i in range(8): a(f"v_add_f32 v{vAcc+i}, v{vAcc+i}, v{vAcc+8*w+i}")
    for i in range(4): a(f"v_cvt_pk_bf16_f32 v{vWF+i}, v{vAcc+2*i}, v{vAcc+2*i+1}")
    a(f"buffer_store_dwordx4 {vr(vWF,4)}, v{vT0}, s[{SD}:{SD+3}], s{sT} offen {OUTP}")
    a("s_waitcnt vmcnt(0)"); stamp_out(1,vT0,sW)
    a("s_waitcnt vmcnt(0)\nL2_end:\ns_endpgm")
kernel1(); kernel2()
a('.section .rodata,"a"\n.p2align 6'); a(desc(K1,256)); a(".p2align 6"); a(desc(K2,160))
print("\n".join(o))
```

```python
import sys, os
NAME="concat_heads__mha_block_cached__gqa_block_cached__near_ridge"
OPT=dict(a.split("=") for a in sys.argv[1:] if "=" in a)
def opt(k,d): return OPT.get(k,d)
KVP=opt("kv","nt"); WP=opt("w",""); XP=opt("x",""); OSP=opt("os",""); OLP=opt("ol",""); WOP=opt("wo",""); OUTP=opt("out","")
o=[]
def a(s): o.append(s)
def vr(b,n): return f"v[{b}:{b+n-1}]"
def desc(name,vg):
    return f'''.amdhsa_kernel {name}
  .amdhsa_next_free_vgpr {vg}
  .amdhsa_next_free_sgpr 102
  .amdhsa_accum_offset {vg}
  .amdhsa_group_segment_fixed_size 0
  .amdhsa_kernarg_size 104
  .amdhsa_user_sgpr_count 2
  .amdhsa_user_sgpr_kernarg_segment_ptr 1
  .amdhsa_system_sgpr_workgroup_id_x 1
.end_amdhsa_kernel'''
def head(name): a(f".globl {name}\n.p2align 8\n.type {name},@function\n{name}:")
def srd(d,a_lo,b_lo,size):
    if b_lo is None: a(f"s_mov_b32 s{d}, s{a_lo}\ns_mov_b32 s{d+1}, s{a_lo+1}")
    else: a(f"s_cselect_b32 s{d}, s{b_lo}, s{a_lo}\ns_cselect_b32 s{d+1}, s{b_lo+1}, s{a_lo+1}")
    a(f"s_mov_b32 s{d+2}, {size:#x}\ns_mov_b32 s{d+3}, 0x00020000")
def mfma(d,x,y,c): a(f"v_mfma_f32_32x32x16_bf16 {vr(d,16)}, {vr(x,4)}, {vr(y,4)}, {c if isinstance(c,str) else vr(c,16)}")
ST=opt("st","0")=="1"
def stamp(real=False):
    if not ST: return
    a(f"{'s_memrealtime' if real else 's_memtime'} s[96:97]\ns_waitcnt lgkmcnt(0)\ns_mov_b32 m0, s99\ns_add_u32 s99, s99, 1\nv_writelane_b32 v{STV[0]}, s96, m0")
STV=[0]
def stamp_init(v):
    STV[0]=v
    if ST: a(f"s_mov_b32 s99, 0\nv_mov_b32 v{v}, 0"); stamp(True); stamp()
def stamp_out(k,vt,sw):
    if not ST: return
    stamp(); stamp(True)
    a(f"s_mov_b32 s92, s28\ns_mov_b32 s93, s29\ns_mov_b32 s94, 0x10000000\ns_mov_b32 s95, 0x20000")
    a(f"s_lshl_b32 s96, s2, 3\ns_add_u32 s96, s96, s{sw}\ns_lshl_b32 s96, s96, 8\ns_add_u32 s96, s96, {0x2000000+k*0x80000}")
    a(f"v_and_b32 v{vt}, 63, v0\nv_lshlrev_b32 v{vt}, 2, v{vt}\nbuffer_store_dword v{STV[0]}, v{vt}, s[92:95], s96 offen\ns_waitcnt vmcnt(0)")
K1=NAME+"_kernel"; K2=NAME+"_oproj_kernel"
a(open("cdna_kernels/"+NAME+".s.ref").read().split("; Override")[0].rstrip())
a(f"; @launch kernel={K1} grid=(256,1,1) block=(512,1,1) lds=163840")
a(f"; @launch kernel={K2} grid=(256,1,1) block=(512,1,1) lds=131072")
a('.amdgcn_target "amdgcn-amd-amdhsa--gfx950"\n.text')
def ptrs():
    if opt("bad","0")=="1": a("s_and_b32 s3, s2, 7\ns_lshl_b32 s3, s3, 5\ns_lshr_b32 s2, s2, 3\ns_or_b32 s2, s2, s3")
    a("s_load_dwordx16 s[4:19], s[0:1], 0\ns_load_dwordx8 s[20:27], s[0:1], 64\ns_load_dwordx2 s[28:29], s[0:1], 96")
class Cnt:
    def __init__(s,name,mx): s.q=[]; s.name=name; s.mx=mx; s.done=0
    def issue(s,tag): s.q.append(tag)
    def wait(s,tags):
        idx=[i for i,t in enumerate(s.q) if t in tags]
        if not idx or idx[-1]<s.done: return
        n=len(s.q)-1-idx[-1]
        if n>s.mx: n=s.mx
        s.done=len(s.q)-n
        a(f"s_waitcnt {s.name}({n})")
def kernel1():
    head(K1)
    a("s_cmp_ge_u32 s2, 256\ns_cbranch_scc1 L1_end")
    stamp_init(19)
    if opt("dbg","0")=="1": a("s_memtime s[84:85]\ns_memrealtime s[86:87]")
    ptrs()
    SX,SK,SV,SW,SO=32,36,40,44,48
    sW,sHalf,sQb,sHead,sB,sBr=52,53,54,55,56,57
    sKV,sT,sT2,sC,sLw,sLw2,sJ0,sAny=58,59,60,64,65,66,67,78
    sEv,sOd,sLo,sHi=68,70,72,74
    sXo,sWo=76,77
    vL,vDK,vDV,vDW,vX,vK0,vV0,vW0=1,2,3,4,5,6,7,8
    vM,vLs,vLs2,vAl,vT0,vT1,vT2,vT3=9,10,11,12,13,14,15,16
    vVA=20; vKA=24
    vQ=32; vO=64; vS=128; vE=160; vP=192; vF=208
    vXF=128; vXT=192
    PD=int(opt("pd","6")); BAR=15-PD
    vm=Cnt("vmcnt",63); lg=Cnt("lgkmcnt",15)
    a(f"v_lshrrev_b32 v{vT0}, 6, v0\nv_and_b32 v{vL}, 63, v0\nv_readfirstlane_b32 s{sW}, v{vT0}")
    a(f"s_and_b32 s{sBr}, s2, 1\ns_lshr_b32 s{sT}, s2, 1\ns_and_b32 s{sT}, s{sT}, 3\ns_lshl_b32 s{sT}, s{sT}, 3")
    a(f"s_lshr_b32 s{sT2}, s2, 3\ns_and_b32 s{sT2}, s{sT2}, 7\ns_add_u32 s{sHead}, s{sT}, s{sT2}")
    a(f"s_lshr_b32 s{sHalf}, s{sW}, 2\ns_and_b32 s{sQb}, s{sW}, 3\ns_lshr_b32 s{sB}, s2, 6\ns_lshl_b32 s{sB}, s{sB}, 1")
    ROT=opt("rot","0")
    def order(g):
        if ROT=="0": return list(range(8))
        if ROT=="2": return [g,4+g]+[x for k in (1,2,3) for x in ((g+k)&3,4+((g+k)&3))]
        if ROT=="3": return [(g+k)&3 for k in range(4)]+[4+((g+k)&3) for k in range(4)]
        lead={0:g,1+g:4+g}; rest=[(g+k)&3 for k in (1,2,3)]+[b for b in range(4,8) if b!=4+g]
        return [lead[i] if i in lead else rest.pop(0) for i in range(8)]
    a(f"s_lshr_b32 s{sT}, s2, 6\ns_add_u32 s{sT}, s{sT}, s{sT2}\ns_and_b32 s{sT}, s{sT}, 3")
    for g in range(4):
        t=sum(b<<(4*i) for i,b in enumerate(order(g))); assert sorted(order(g))==list(range(8))
        a(f"s_mov_b32 s{sJ0}, {t:#x}" if g==0 else f"s_cmp_eq_u32 s{sT}, {g}\ns_cmov_b32 s{sJ0}, {t:#x}")
    a(f"s_add_u32 s{sB}, s{sB}, s{sHalf}")
    a(f"v_lshrrev_b32 v{vT0}, 4, v{vL}\nv_and_b32 v{vT1}, 15, v{vL}\nv_lshlrev_b32 v{vT2}, 2, v{vT0}\nv_xor_b32 v{vT1}, v{vT1}, v{vT2}")
    a(f"v_lshlrev_b32 v{vT2}, 4, v{vT1}\nv_lshl_add_u32 v{vDW}, v{vT0}, 13, v{vT2}\nv_lshl_add_u32 v{vDV}, v{vT0}, 8, v{vT2}")
    a(f"v_xor_b32 v{vT1}, s{sQb}, v{vT1}\nv_lshlrev_b32 v{vT2}, 4, v{vT1}\nv_lshl_add_u32 v{vDK}, v{vT0}, 8, v{vT2}")
    a(f"v_bfe_u32 v{vT0}, v{vL}, 2, 3\nv_lshlrev_b32 v{vT0}, 12, v{vT0}\nv_lshrrev_b32 v{vT1}, 5, v{vL}\nv_lshlrev_b32 v{vT1}, 6, v{vT1}")
    a(f"v_and_b32 v{vT2}, 3, v{vL}\nv_lshlrev_b32 v{vT2}, 4, v{vT2}\nv_add3_u32 v{vX}, v{vT0}, v{vT1}, v{vT2}")
    a(f"s_lshl_b32 s{sXo}, s{sB}, 2\ns_add_u32 s{sXo}, s{sXo}, s{sQb}\ns_lshl_b32 s{sXo}, s{sXo}, 15")
    a(f"s_lshl_b32 s{sWo}, s{sW}, 16\ns_lshl_b32 s{sT}, s{sHead}, 8\ns_add_u32 s{sWo}, s{sWo}, s{sT}")
    a(f"s_lshl_b32 s{sKV}, s{sB}, 5\ns_add_u32 s{sKV}, s{sKV}, s{sHead}\ns_lshl_b32 s{sKV}, s{sKV}, 17\ns_lshl_b32 s{sT}, s{sQb}, 12\ns_add_u32 s{sKV}, s{sKV}, s{sT}")
    a(f"s_lshl_b32 s{sLw}, s{sW}, 12\ns_lshl_b32 s{sLw2}, s{sW}, 11")
    a("s_waitcnt lgkmcnt(0)")
    a(f"s_cmp_eq_u32 s{sBr}, 1")
    srd(SW,10,20,0 if opt('nowq','0')=='1' else 0x400000); srd(SX,4,14,0 if opt('nox','0')=='1' else 0x100000)
    ksz=0 if opt('nokv','0')=='1' else 0x2000000
    srd(80,12,22,0x400000); srd(SK,6,16,ksz); srd(SV,8,18,ksz); srd(SO,28,None,0x1000000)
    def ld_w(j):
        def f(n):
            if n==0: a(f"s_bfe_u32 s{sT2}, s{sJ0}, {0x40000+4*j:#x}\ns_lshl_b32 s{sT2}, s{sT2}, 19\ns_add_u32 s{sT2}, s{sT2}, s{sWo}")
            a(f"s_add_u32 m0, s{sLw2}, {(j&3)*16384+n*1024}")
            a(f"s_add_u32 s{sT2}, s{sT2}, {n*32768}")
            a(f"buffer_load_dwordx4 v{vDW}, s[{SW}:{SW+3}], s{sT2} offen {WP} lds"); vm.issue(("W",j))
        return [lambda n=n:f(n) for n in range(2)]
    def ld_x(j):
        def f(i):
            if i==0: a(f"s_bfe_u32 s{sT2}, s{sJ0}, {0x40000+4*j:#x}\ns_lshl_b32 s{sT2}, s{sT2}, 7\ns_add_u32 s{sT2}, s{sT2}, s{sXo}")
            a(f"buffer_load_dwordx4 {vr(vXF+16*(j&3)+4*i,4)}, v{vX}, s[{SX}:{SX+3}], s{sT2} offen offset:{i*1024} {XP}"); vm.issue(("X",j))
        return [lambda i=i:f(i) for i in range(4)]
    def pf_wo():
        a(f"s_lshr_b32 s{sT2}, s2, 1\ns_lshl_b32 s{sT2}, s{sT2}, 15\ns_add_u32 s{sT2}, s{sT2}, s{sLw}\nv_lshlrev_b32 v17, 6, v{vL}")
        a(f"buffer_load_dword v18, v17, s[80:83], s{sT2} offen"); vm.issue("pf")
    seq=[("K",0)]
    for t in range(7): seq+=[("K",t+1),("V",t)]
    seq+=[("V",7)]
    slot=lambda n:((n+2)%5)*32768
    def ld_kv(n,p):
        ty,t=seq[n]
        def f():
            a(f"s_add_u32 m0, s{sLw}, {slot(n)}\ns_add_u32 s{sT}, s{sKV}, {t*16384}")
            r,v=(SK,vDK) if ty=="K" else (SV,vDV)
            a(f"buffer_load_dwordx4 v{v}, s[{r}:{r+3}], s{sT} offen offset:{p*1024} {KVP} lds"); vm.issue(("KV",n))
        return f
    KS=[int(c) for c in opt("ks","22222222")]; kq=[(n,p) for n in range(4) for p in range(4)]
    assert sum(KS)==16 and sum(KS[:6])<=12
    def kv_early(pos): return [ld_kv(*kq.pop(0)) for _ in range(KS[pos])]
    UP=int(opt("up","2"))
    w1=ld_w(1)
    for f in ld_w(0)+ld_x(0)+ld_x(1)+w1+(ld_w(2)+ld_x(2) if UP==3 else []): f()
    if opt("pfw","-")=="p": pf_wo()
    a(f"v_bfe_u32 v{vT0}, v{vL}, 2, 2\nv_lshrrev_b32 v{vT1}, 5, v{vL}\nv_bfe_u32 v{vT2}, v{vL}, 4, 1")
    a(f"v_mul_u32_u24 v{vT3}, 320, v{vT0}\nv_lshl_add_u32 v{vT3}, v{vT2}, 5, v{vT3}")
    a(f"v_lshl_add_u32 v{vVA}, v{vT1}, 13, v{vT3}\nv_and_b32 v{vT2}, 1, v{vL}\nv_lshl_add_u32 v{vVA}, v{vT2}, 4, v{vVA}\nv_bfe_u32 v{vT2}, v{vL}, 1, 1\nv_lshl_add_u32 v{vVA}, v{vT2}, 3, v{vVA}")
    for db in range(1,4): a(f"v_xor_b32 v{vVA+db}, {db*64}, v{vVA}")
    a(f"v_lshl_add_u32 v{vV0}, v{vT1}, 12, v{vT3}\nv_and_b32 v{vT2}, 3, v{vL}\nv_lshl_add_u32 v{vV0}, v{vT2}, 3, v{vV0}")
    a(f"s_lshl_b32 s{sT}, s{sHalf}, 14\nv_add_u32 v{vV0}, s{sT}, v{vV0}")
    a(f"v_lshlrev_b32 v{vK0}, 12, v{vT0}\nv_bfe_u32 v{vT3}, v{vL}, 4, 1\nv_lshl_add_u32 v{vK0}, v{vT3}, 10, v{vK0}\nv_lshl_add_u32 v{vK0}, v{vT2}, 8, v{vK0}")
    a(f"v_lshl_add_u32 v{vT3}, v{vT2}, 2, v{vT0}\nv_xor_b32 v{vT3}, v{vT3}, v{vT1}\nv_lshl_add_u32 v{vK0}, v{vT3}, 4, v{vK0}\nv_add_u32 v{vK0}, s{sT}, v{vK0}")
    for r,v in ((sEv,0x55555555),(sOd,0xaaaaaaaa),(sLo,0x33333333),(sHi,0xcccccccc)): a(f"s_mov_b32 s{r}, {v:#x}\ns_mov_b32 s{r+1}, {v:#x}")
    a(f"s_mov_b32 s{sC}, 0x3e0293ee")
    if opt("prio","0")=="1": a(f"s_cmp_eq_u32 s{sHalf}, 0\ns_cbranch_scc1 L1_noprio\ns_setprio 1\nL1_noprio:")
    def tr_ops(j):
        X=vXF+16*(j&3); r=[]
        for src,dst,bit,mk,mo,perm in ((X,vXT,1,sEv,sOd,"[1,0,3,2]"),(vXT,X,2,sLo,sHi,"[2,3,0,1]")):
            for m,want in ((mk,0),(mo,bit)):
                pre=f"s_mov_b64 vcc, s[{m}:{m+1}]\n"
                for i in range(4):
                    if (i&bit)!=want: continue
                    for d in range(4):
                        r.append(pre+f"v_cndmask_b32_dpp v{dst+4*i+d}, v{src+4*(i^bit)+d}, v{src+4*i+d}, vcc quad_perm:{perm} row_mask:0xf bank_mask:0xf"); pre=""
        return r
    segs=[("W",j) for j in range(8)]+[("KV",n) for n in range(16)]
    abase={"K":None,"V":None}
    def set_addr(sg):
        if sg[0]=="W": return []
        ty,t=seq[sg[1]]; b=slot(sg[1])&~0xffff
        if abase[ty]==b: return []
        abase[ty]=b
        if ty=="K": return [f"v_add_u32 v{vKA}, {b}, v{vK0}"]+[f"v_xor_b32 v{vKA+s}, {s<<5}, v{vKA}" for s in range(1,8)]
        return [f"v_add_u32 v{vVA}, {b}, v{vV0}"]+[f"v_xor_b32 v{vVA+d}, {d*64}, v{vVA}" for d in range(1,4)]
    vNM=240; Sb=lambda t:vS+32*(t&1); Pb=lambda t:vNM if t==7 else vP
    def idx(sg,i): return (i&3,i>>2) if sg in (("W",7),("KV",15)) else (i>>2,i&3)
    def rd(sg,i):
        F=vF+4*(i&7); ks,db=idx(sg,i)
        if sg[0]=="W":
            for r in range(2): a(f"ds_read_b64_tr_b16 {vr(F+2*r,2)}, v{vVA+db} offset:{(sg[1]&3)*16384+(8*ks+4*r)*256}"); lg.issue((sg,i))
            return
        ty,t=seq[sg[1]]; off=slot(sg[1])&0xffff
        if ty=="K": a(f"ds_read_b128 {vr(F,4)}, v{vKA+(i&7)} offset:{off+(i>>3)*2048}"); lg.issue((sg,i))
        else:
            for r in range(2): a(f"ds_read_b64_tr_b16 {vr(F+2*r,2)}, v{vVA+db} offset:{off+(32*r+4*ks)*256}"); lg.issue((sg,i))
    def mm(sg,i):
        F=vF+4*(i&7); ks,db=idx(sg,i)
        if sg[0]=="W": mfma(vO+16*db,F,vXF+16*(sg[1]&3)+4*ks,"0" if sg[1]==0 and ks==0 else vO+16*db); return
        ty,t=seq[sg[1]]
        if ty=="K": mfma(Sb(t)+16*(i>>3),F,vQ+4*(i&7),("0" if t==0 else vNM) if (i&7)==0 else Sb(t)+16*(i>>3))
        else: mfma(vO+16*db,F,Pb(t)+4*ks,"0" if t==0 and ks==0 else vO+16*db)
    def max_a(S): return [f"v_max3_f32 v{vT0}, v{S}, v{S+1}, v{S+2}"]+[f"v_max3_f32 v{vT0}, v{S+i}, v{S+i+1}, v{vT0}" for i in range(3,15,2)]
    def max_b(S): return [f"v_max3_f32 v{vT1}, v{S+16}, v{S+17}, v{S+15}"]+[f"v_max3_f32 v{vT1}, v{S+i}, v{S+i+1}, v{vT1}" for i in range(18,32,2)]+[f"v_max_f32 v{vT0}, v{vT0}, v{vT1}"]
    xh=f"v_mov_b32 v{vT1}, v{vT0}\ns_nop 1\nv_permlane32_swap_b32 v{vT0}, v{vT1}\ns_nop 1\nv_max_f32 v{vT0}, v{vT0}, v{vT1}"
    def check(t):
        S=Sb(t); r=f"v_cmp_lt_f32 vcc, 0x41000000, v{vT0}\ns_nop 0\ns_cbranch_vccz L1_ok{t}\n{xh}\nv_cmp_lt_f32 vcc, 0x41000000, v{vT0}\ns_nop 1\n"
        r+=f"v_cndmask_b32 v{vT0}, 0, v{vT0}, vcc\nv_exp_f32 v{vAl}, -v{vT0}\n"
        r+="".join(f"v_sub_f32 v{S+i}, v{S+i}, v{vT0}\n" for i in range(32))+"".join(f"v_sub_f32 v{vNM+i}, v{vNM+i}, v{vT0}\n" for i in range(16))
        return r+f"v_mul_f32 v{vLs}, v{vAl}, v{vLs}\nv_mul_f32 v{vLs2}, v{vAl}, v{vLs2}\nL1_ok{t}:"
    NE=int(opt("ne","16"))
    def cvt(t,i): return f"v_cvt_pk_bf16_f32 v{Pb(t)+i//2}, v{Sb(t)+i}, v{Sb(t)+i+1}"
    def sm(t,lo,hi,pack,extra=[]):
        S=Sb(t); r=[]; extra=list(extra)
        for i in range(lo,hi+2,2):
            if i<hi:
                if t==0: r+=[f"v_sub_f32 v{S+k}, v{S+k}, v{vT0}" for k in (i,i+1)]
                r+=[f"v_exp_f32 v{S+k}, v{S+k}" for k in (i,i+1)]
            if extra: r.append(extra.pop(0))
            if i>lo:
                p=i-2
                if t==0 and p==0: r+=[f"v_mov_b32 v{vLs}, v{S}",f"v_mov_b32 v{vLs2}, v{S+1}"]
                else: r+=[f"v_add_f32 v{vLs}, v{vLs}, v{S+p}",f"v_add_f32 v{vLs2}, v{vLs2}, v{S+p+1}"]
                if pack: r.append(cvt(t,p))
        return r+extra
    def qcv(db): return [x for i in range(8) for x in (f"v_mul_f32 v{vO+16*db+2*i}, s{sC}, v{vO+16*db+2*i}",f"v_mul_f32 v{vO+16*db+2*i+1}, s{sC}, v{vO+16*db+2*i+1}")]+[f"v_cvt_pk_bf16_f32 v{vQ+8*db+i}, v{vO+16*db+2*i}, v{vO+16*db+2*i+1}" for i in range(8)]
    def ofin(db):
        r=[]
        for f in (2*db,2*db+1):
            r+=[f"v_mul_f32 v{vO+8*f+i}, v{vT0}, v{vO+8*f+i}" for i in range(8)]+[f"v_cvt_pk_bf16_f32 v{vS+4*f+i}, v{vO+8*f+2*i}, v{vO+8*f+2*i+1}" for i in range(4)]
            r.append(f"buffer_store_dwordx4 {vr(vS+4*f,4)}, v{vT3}, s[{SO}:{SO+3}], s{sT if f<4 else sT2} offen offset:{(f&3)*1024} {OSP}")
        return r
    lsum=[f"v_add_f32 v{vLs}, v{vLs}, v{vLs2}",f"v_lshlrev_b32 v{vT3}, 4, v{vL}",f"v_mov_b32 v{vT1}, v{vLs}\ns_nop 1\nv_permlane32_swap_b32 v{vLs}, v{vT1}\ns_nop 1\nv_add_f32 v{vLs}, v{vLs}, v{vT1}",f"v_rcp_f32 v{vT0}, v{vLs}",
      f"s_lshl_b32 s{sT}, s{sBr}, 3\ns_add_u32 s{sT}, s{sT}, s{sB}\ns_lshl_b32 s{sT}, s{sT}, 2\ns_add_u32 s{sT}, s{sT}, s{sQb}\ns_lshl_b32 s{sT}, s{sT}, 5\ns_add_u32 s{sT}, s{sT}, s{sHead}\ns_lshl_b32 s{sT}, s{sT}, 13\ns_add_u32 s{sT2}, s{sT}, 4096"]
    cost=lambda s: 2 if s.startswith("v_exp") else 1
    at=lambda e,l:[(e,x) for x in l]
    LSP=int(opt("lsp","4")); pend={}
    vm.wait([("W",0),("X",0)]); a("s_barrier"); stamp()
    for i in range(PD): rd(segs[0],i)
    l0=ld_w(2)+ld_x(2) if UP==2 else []
    if opt("pfw","-")=="q": l0.append(pf_wo)
    for k,s_ in enumerate(tr_ops(0)):
        a(s_)
        if k%4==0 and l0: l0.pop(0)()
    a("s_nop 1")
    for si,sg in enumerate(segs):
        nxt=segs[si+1] if si+1<len(segs) else None
        fill=[]; start=0; last=14; ty=None
        def sched(l,g0,sp):
            for k,f in enumerate(l): pend.setdefault(16*si+g0+int(k*sp),[]).append(f)
        if sg[0]=="W":
            j=sg[1]
            if j<7: vm.wait([("X",j+1)]); fill=at(0,tr_ops(j+1))
            else: fill=at(5,qcv(0))+at(9,qcv(1))+at(13,qcv(2)); start=5; last=15
            if j+3<8: sched(ld_x(j+3),0,2)
            l=(ld_w(j+3) if j+3<8 else [])+kv_early(j)+([pf_wo] if str(j)==opt("pfw","-") else [])
            if l: sched(l,BAR,(16-BAR)/len(l))
        else:
            n=sg[1]; ty,t=seq[n]
            if n+4<16: sched([ld_kv(n+4,p) for p in range(4)],BAR,LSP)
            if opt("pfw","-")=="k%d"%n: sched([pf_wo],BAR,1)
            if n==0: fill=at(1,qcv(3))+at(10,max_a(Sb(0))); start=1; last=4
            elif n==1: fill=at(0,sm(0,0,32,True))
            elif ty=="K": fill=at(0,sm(t-1,NE,32,True,[cvt(t-1,i) for i in range(0,NE,2)]))
            elif t<7:
                fill=at(0,max_a(Sb(t+1)))+at(2,max_b(Sb(t+1))+[check(t+1)]+(sm(t+1,0,NE,False) if t<6 else sm(7,0,32,True))); last=15
            else: fill=at(0,lsum)+at(5,ofin(0))+at(9,ofin(1))+at(13,ofin(2)); last=15
        tot=sum(cost(x) for e,x in fill); acc=0
        for i in range(16):
            lg.wait([(sg,i)]); mm(sg,i)
            if i+PD<16: rd(sg,i+PD)
            elif nxt: rd(nxt,i+PD-16)
            if i==BAR and nxt:
                for s_ in set_addr(nxt): a(s_)
                vm.wait([nxt]); a("s_barrier")
            for f in pend.pop(16*si+i,[]): f()
            while fill and i>=max(start,fill[0][0]) and acc<tot*(i+1-start)/(last+1-start):
                x=fill.pop(0)[1]; acc+=cost(x); a(x)
        assert not fill
        if sg==("KV",0):
            a("s_nop 7\ns_nop 3")
            for s_ in max_b(Sb(0))+[xh]+[f"v_sub_f32 v{vNM+i}, 0, v{vT0}" for i in range(16)]+["s_nop 1"]: a(s_)
        if ty=="V" and t<7:
            a(f"s_cbranch_vccz L1_nr{t}\ns_nop 7\ns_nop 3")
            for i in range(64): a(f"v_mul_f32 v{vO+i}, v{vAl}, v{vO+i}")
            a(f"L1_nr{t}:")
            if t==6: a("s_nop 1")
        if ST: lg.done=len(lg.q); stamp()
    assert not pend
    a("s_nop 7")
    for s_ in ofin(3): a(s_)
    stamp(); a("s_waitcnt vmcnt(0)"); stamp_out(0,vT0,sW)
    if opt("dbg","0")=="1":
        a("s_memtime s[88:89]\ns_memrealtime s[90:91]\ns_waitcnt lgkmcnt(0)\ns_sub_u32 s88, s88, s84\ns_sub_u32 s90, s90, s86\ns_and_b32 s91, s2, 31\ns_cmp_lg_u32 s91, 0\ns_cbranch_scc1 L1_end")
        a("s_mov_b32 s92, s28\ns_mov_b32 s93, s29\ns_mov_b32 s94, 0x10000000\ns_mov_b32 s95, 0x20000\ns_add_u32 s91, s2, 0x3000000\nv_mov_b32 v2, s88\nv_mov_b32 v3, s90\nv_mov_b32 v4, s86\nv_mov_b32 v6, 0\nbuffer_store_dwordx3 v[2:4], v6, s[92:95], s91 offen\ns_waitcnt vmcnt(0)")
    a("L1_end:\ns_endpgm")
def kernel2():
    head(K2)
    a("s_cmp_ge_u32 s2, 256\ns_cbranch_scc1 L2_end")
    stamp_init(10)
    if opt("dbg","0")=="1": a("s_memtime s[84:85]\ns_memrealtime s[86:87]")
    ptrs()
    SW,SO,SD=32,36,40
    sW,sBr,sRt,sCt,sT,sT2,sO0,sO1,sWo,sLw=52,53,54,55,56,57,58,59,60,61
    vL,vOA,vDW,vA0,vA1,vT0,vT1,vT2,vT3=1,2,3,4,5,6,7,8,9
    vAcc=12; vWF=76; vOF=92; D=int(opt("d","8")); BAR2=opt("bar","0")=="1"; ORD=opt("ord","0")
    sTb,sWb,sOb0,sOb1=62,64,65,66
    def order(g):
        if ORD=="0": return list(range(16))
        if ORD=="2": return [(i&8)|((i+2*g)&7) for i in range(16)]
        if ORD=="3": return [(i&12)|((i+g)&3) for i in range(16)]
        lead={0:g}; lead.update({1+g+4*k:4+g+4*k for k in range(3)}); rest=[b for b in range(16) if b%4!=g]
        if ORD=="4": rest[0:3]=[(g+k)&3 for k in (1,2,3)]
        return [lead[i] if i in lead else rest.pop(0) for i in range(16)]
    a(f"v_lshrrev_b32 v{vT0}, 6, v0\nv_and_b32 v{vL}, 63, v0\nv_readfirstlane_b32 s{sW}, v{vT0}")
    a(f"s_and_b32 s{sBr}, s2, 1\ns_lshr_b32 s{sT}, s2, 1\ns_and_b32 s{sT}, s{sT}, 3\ns_lshl_b32 s{sT}, s{sT}, 2\ns_lshr_b32 s{sT2}, s2, 3\ns_and_b32 s{sT2}, s{sT2}, 3\ns_add_u32 s{sRt}, s{sT}, s{sT2}\ns_lshr_b32 s{sCt}, s2, 5")
    a(f"v_lshlrev_b32 v{vOA}, 4, v{vL}")
    a(f"v_lshrrev_b32 v{vT0}, 3, v{vL}\nv_and_b32 v{vT1}, 7, v{vL}\nv_bfe_u32 v{vT2}, v{vL}, 4, 1\nv_lshlrev_b32 v{vT2}, 2, v{vT2}\nv_xor_b32 v{vT1}, v{vT1}, v{vT2}\nv_lshlrev_b32 v{vT1}, 4, v{vT1}\nv_lshl_add_u32 v{vDW}, v{vT0}, 10, v{vT1}")
    a("s_waitcnt lgkmcnt(0)")
    a(f"s_cmp_eq_u32 s{sBr}, 1")
    srd(SW,12,22,0 if opt('nowo','0')=='1' else 0x400000); srd(SO,28,None,0 if opt('noo','0')=='1' else 0x1000000); srd(SD,24,None,0x200000)
    a(f"s_lshl_b32 s{sO0}, s{sBr}, 4\ns_add_u32 s{sO0}, s{sO0}, s{sRt}\ns_lshl_b32 s{sO0}, s{sO0}, 19\ns_lshl_b32 s{sT}, s{sW}, 15\ns_add_u32 s{sO0}, s{sO0}, s{sT}\ns_add_u32 s{sO1}, s{sO0}, 0x40000")
    a(f"s_lshl_b32 s{sWo}, s{sW}, 19\ns_lshl_b32 s{sT}, s{sCt}, 7\ns_add_u32 s{sWo}, s{sWo}, s{sT}\ns_lshl_b32 s{sLw}, s{sW}, 14")
    a(f"s_add_u32 s{sT}, s{sRt}, s{sCt}\ns_and_b32 s{sT}, s{sT}, 3")
    for g in range(4):
        t=sum(b<<(4*i) for i,b in enumerate(order(g))); assert sorted(order(g))==list(range(16))
        if g==0: a(f"s_mov_b32 s{sTb}, {t&0xffffffff:#x}\ns_mov_b32 s{sTb+1}, {t>>32:#x}")
        else: a(f"s_cmp_eq_u32 s{sT}, {g}\ns_cmov_b32 s{sTb}, {t&0xffffffff:#x}\ns_cmov_b32 s{sTb+1}, {t>>32:#x}")
    def load(s):
        sl=s%D
        if s%2==0:
            a(f"s_bfe_u32 s{sT}, s{sTb+(s>>4)}, {0x40000+4*((s>>1)&7):#x}\ns_lshl_b32 s{sWb}, s{sT}, 15\ns_add_u32 s{sWb}, s{sWb}, s{sWo}")
            a(f"s_lshl_b32 s{sT}, s{sT}, 11\ns_add_u32 s{sOb0}, s{sO0}, s{sT}\ns_add_u32 s{sOb1}, s{sO1}, s{sT}")
            if BAR2 and s: a("s_barrier")
        for n in range(2):
            a(f"s_add_u32 m0, s{sLw}, {sl*2048+n*1024}\ns_add_u32 s{sT}, s{sWb}, {(16*(s&1)+8*n)*1024}")
            a(f"buffer_load_dwordx4 v{vDW}, s[{SW}:{SW+3}], s{sT} offen {WOP} lds")
        for rb in range(2): a(f"buffer_load_dwordx4 {vr(vOF+8*sl+4*rb,4)}, v{vOA}, s[{SO}:{SO+3}], s{sOb1 if rb else sOb0} offen offset:{(s&1)*1024} {OLP}")
    for s in range(D): load(s)
    a(f"v_bfe_u32 v{vT0}, v{vL}, 2, 2\nv_lshrrev_b32 v{vT1}, 5, v{vL}\nv_lshl_add_u32 v{vT1}, v{vT1}, 2, v{vT0}\nv_lshlrev_b32 v{vA0}, 7, v{vT1}")
    a(f"v_lshrrev_b32 v{vT0}, 1, v{vT0}\nv_lshl_add_u32 v{vA0}, v{vT0}, 6, v{vA0}\nv_and_b32 v{vT0}, 1, v{vL}\nv_lshl_add_u32 v{vA0}, v{vT0}, 5, v{vA0}")
    a(f"v_bfe_u32 v{vT0}, v{vL}, 4, 1\nv_lshl_add_u32 v{vA0}, v{vT0}, 4, v{vA0}\nv_bfe_u32 v{vT0}, v{vL}, 1, 1\nv_lshl_add_u32 v{vA0}, v{vT0}, 3, v{vA0}")
    a(f"v_add_u32 v{vA0}, s{sLw}, v{vA0}\nv_xor_b32 v{vA1}, 64, v{vA0}")
    def wread(s):
        for nb in range(2):
            for rd in range(2): a(f"ds_read_b64_tr_b16 {vr(vWF+(s&1)*8+nb*4+rd*2,2)}, v{vA1 if nb else vA0} offset:{(s%D)*2048+rd*1024}")
    NS=32
    a(f"s_waitcnt vmcnt({4*(D-1)})"); wread(0)
    for s in range(NS):
        if s+1<NS:
            a(f"s_waitcnt vmcnt({4*(min(NS,s+D)-(s+2))})"); wread(s+1); a("s_waitcnt lgkmcnt(4)")
        else: a("s_waitcnt lgkmcnt(0)")
        for nb in range(2):
            for rb in range(2): mfma(vAcc+16*(2*nb+rb), vWF+(s&1)*8+nb*4, vOF+8*(s%D)+4*rb, "0" if s==0 else vAcc+16*(2*nb+rb))
        if s%2==0: stamp()
        if s+D<NS: load(s+D)
    a(f"v_add_u32 v{vT0}, s{sLw}, v{vOA}\ns_lshl_b32 s{sT}, s{sW}, 11\nv_add_u32 v{vT1}, s{sT}, v{vOA}\nv_add_u32 v{vT2}, 0x10000, v{vT1}\ns_nop 7")
    for p in range(16): a(f"ds_write_b128 v{vT0}, {vr(vAcc+4*p,4)} offset:{p*1024}")
    a("s_waitcnt lgkmcnt(0)"); stamp(); a("s_barrier"); stamp()
    for w in range(8):
        for p in range(2): a(f"ds_read_b128 {vr(vAcc+8*w+4*p,4)}, v{vT1 if w<4 else vT2} offset:{(w&3)*16384+p*1024}")
    a(f"v_and_b32 v{vT0}, 31, v{vL}\nv_lshlrev_b32 v{vT0}, 11, v{vT0}\nv_lshrrev_b32 v{vT3}, 5, v{vL}\nv_lshl_add_u32 v{vT0}, v{vT3}, 5, v{vT0}")
    a(f"s_lshl_b32 s{sT}, s{sRt}, 1\ns_bfe_u32 s{sT2}, s{sW}, 0x10001\ns_add_u32 s{sT}, s{sT}, s{sT2}\ns_lshl_b32 s{sT}, s{sT}, 16")
    a(f"s_lshl_b32 s{sT2}, s{sBr}, 10\ns_add_u32 s{sT}, s{sT}, s{sT2}\ns_lshl_b32 s{sT2}, s{sCt}, 7\ns_add_u32 s{sT}, s{sT}, s{sT2}")
    a(f"s_lshr_b32 s{sT2}, s{sW}, 2\ns_lshl_b32 s{sT2}, s{sT2}, 6\ns_add_u32 s{sT}, s{sT}, s{sT2}\ns_and_b32 s{sT2}, s{sW}, 1\ns_lshl_b32 s{sT2}, s{sT2}, 4\ns_add_u32 s{sT}, s{sT}, s{sT2}")
    for w in range(1,8):
        a(f"s_waitcnt lgkmcnt({14-2*w})")
        for i in range(8): a(f"v_add_f32 v{vAcc+i}, v{vAcc+i}, v{vAcc+8*w+i}")
    for i in range(4): a(f"v_cvt_pk_bf16_f32 v{vWF+i}, v{vAcc+2*i}, v{vAcc+2*i+1}")
    a(f"buffer_store_dwordx4 {vr(vWF,4)}, v{vT0}, s[{SD}:{SD+3}], s{sT} offen {OUTP}")
    a("s_waitcnt vmcnt(0)"); stamp_out(1,vT0,sW)
    if opt("dbg","0")=="1":
        a("s_memtime s[88:89]\ns_memrealtime s[90:91]\ns_waitcnt lgkmcnt(0)\ns_sub_u32 s88, s88, s84\ns_sub_u32 s89, s90, s86\ns_and_b32 s91, s2, 127\ns_cmp_lg_u32 s91, 0\ns_cbranch_scc1 L2_end")
        a("s_mov_b32 s92, s28\ns_mov_b32 s93, s29\ns_mov_b32 s94, 0x10000000\ns_mov_b32 s95, 0x20000\ns_add_u32 s91, s2, 0x3000000\nv_mov_b32 v1, 0\nbuffer_load_dwordx3 v[4:6], v1, s[92:95], s91 offen\ns_waitcnt vmcnt(0)")
        a("s_mov_b32 s92, s26\ns_mov_b32 s93, s27\ns_mov_b32 s94, 256\ns_lshr_b32 s91, s2, 2\nv_mov_b32 v2, s88\nv_mov_b32 v3, s89\nv_sub_u32 v7, s90, v6\nv_sub_u32 v6, s86, v6\nbuffer_store_dwordx4 v[2:5], v1, s[92:95], s91 offen\nbuffer_store_dwordx2 v[6:7], v1, s[92:95], s91 offen offset:16")
    a("s_waitcnt vmcnt(0)\nL2_end:\ns_endpgm")
kernel1(); kernel2()
a('.section .rodata,"a"\n.p2align 6'); a(desc(K1,256)); a(".p2align 6"); a(desc(K2,160))
print("\n".join(o))
```

```python
import sys, os
NAME="concat_heads__mha_block_cached__gqa_block_cached__near_ridge"
OPT=dict(a.split("=") for a in sys.argv[1:] if "=" in a)
def opt(k,d): return OPT.get(k,d)
KVP=opt("kv","nt"); WP=opt("w",""); XP=opt("x",""); OSP=opt("os",""); OLP=opt("ol",""); WOP=opt("wo",""); OUTP=opt("out","")
o=[]
def a(s): o.append(s)
def vr(b,n): return f"v[{b}:{b+n-1}]"
def desc(name,vg):
    return f'''.amdhsa_kernel {name}
  .amdhsa_next_free_vgpr {vg}
  .amdhsa_next_free_sgpr 102
  .amdhsa_accum_offset {vg}
  .amdhsa_group_segment_fixed_size 0
  .amdhsa_kernarg_size 104
  .amdhsa_user_sgpr_count 2
  .amdhsa_user_sgpr_kernarg_segment_ptr 1
  .amdhsa_system_sgpr_workgroup_id_x 1
.end_amdhsa_kernel'''
def head(name): a(f".globl {name}\n.p2align 8\n.type {name},@function\n{name}:")
def srd(d,a_lo,b_lo,size):
    if b_lo is None: a(f"s_mov_b32 s{d}, s{a_lo}\ns_mov_b32 s{d+1}, s{a_lo+1}")
    else: a(f"s_cselect_b32 s{d}, s{b_lo}, s{a_lo}\ns_cselect_b32 s{d+1}, s{b_lo+1}, s{a_lo+1}")
    a(f"s_mov_b32 s{d+2}, {size:#x}\ns_mov_b32 s{d+3}, 0x00020000")
def mfma(d,x,y,c): a(f"v_mfma_f32_32x32x16_bf16 {vr(d,16)}, {vr(x,4)}, {vr(y,4)}, {c if isinstance(c,str) else vr(c,16)}")
ST=opt("st","0")!="0"
def stamp(real=False):
    if not ST: return
    a(f"{'s_memrealtime' if real else 's_memtime'} s[96:97]\ns_waitcnt lgkmcnt(0)\ns_mov_b32 m0, s99\ns_add_u32 s99, s99, 1\nv_writelane_b32 v{STV[0]}, s96, m0")
STV=[0]
def stamp_init(v):
    STV[0]=v
    if ST: a(f"s_mov_b32 s99, 0\nv_mov_b32 v{v}, 0"); stamp(True); stamp()
def stamp_out(k,vt,sw):
    if not ST: return
    stamp(); stamp(True)
    a(f"s_mov_b32 s92, s28\ns_mov_b32 s93, s29\ns_mov_b32 s94, 0x10000000\ns_mov_b32 s95, 0x20000")
    a(f"s_lshl_b32 s96, s2, 3\ns_add_u32 s96, s96, s{sw}\ns_lshl_b32 s96, s96, 8\ns_add_u32 s96, s96, {0x2000000+k*0x80000}")
    a(f"v_and_b32 v{vt}, 63, v0\nv_lshlrev_b32 v{vt}, 2, v{vt}\nbuffer_store_dword v{STV[0]}, v{vt}, s[92:95], s96 offen\ns_waitcnt vmcnt(0)")
K1=NAME+"_kernel"; K2=NAME+"_oproj_kernel"
a(open("cdna_kernels/"+NAME+".s.ref").read().split("; Override")[0].rstrip())
a(f"; @launch grid=(256,1,1) block=(512,1,1) lds=163840")
a('.amdgcn_target "amdgcn-amd-amdhsa--gfx950"\n.text')
def ptrs():
    if opt("bad","0")=="1": a("s_and_b32 s3, s2, 7\ns_lshl_b32 s3, s3, 5\ns_lshr_b32 s2, s2, 3\ns_or_b32 s2, s2, s3")
    a("s_load_dwordx16 s[4:19], s[0:1], 0\ns_load_dwordx8 s[20:27], s[0:1], 64\ns_load_dwordx2 s[28:29], s[0:1], 96")
class Cnt:
    def __init__(s,name,mx): s.q=[]; s.name=name; s.mx=mx; s.done=0
    def issue(s,tag): s.q.append(tag)
    def wait(s,tags):
        idx=[i for i,t in enumerate(s.q) if t in tags]
        if not idx or idx[-1]<s.done: return
        n=len(s.q)-1-idx[-1]
        if n>s.mx: n=s.mx
        s.done=len(s.q)-n
        a(f"s_waitcnt {s.name}({n})")
def kernel1():
    head(K1)
    a("s_cmp_ge_u32 s2, 256\ns_cbranch_scc1 L1_end")
    stamp_init(19)
    if opt("dbg","0")=="1": a("s_memtime s[84:85]\ns_memrealtime s[86:87]")
    ptrs()
    SX,SK,SV,SW,SO=32,36,40,44,48
    sW,sHalf,sQb,sHead,sB,sBr=52,53,54,55,56,57
    sKV,sT,sT2,sC,sLw,sLw2,sJ0,sAny=58,59,60,64,65,66,67,78
    sEv,sOd,sLo,sHi=68,70,72,74
    sXo,sWo=76,77
    vL,vDK,vDV,vDW,vX,vK0,vV0,vW0=1,2,3,4,5,6,7,8
    vM,vLs,vLs2,vAl,vT0,vT1,vT2,vT3=9,10,11,12,13,14,15,16
    vVA=20; vKA=24
    vQ=32; vO=64; vS=128; vE=160; vP=192; vF=208
    vXF=128; vXT=192
    PD=int(opt("pd","6")); BAR=15-PD
    vm=Cnt("vmcnt",63); lg=Cnt("lgkmcnt",15)
    a(f"v_lshrrev_b32 v{vT0}, 6, v0\nv_and_b32 v{vL}, 63, v0\nv_readfirstlane_b32 s{sW}, v{vT0}")
    a(f"s_and_b32 s{sBr}, s2, 1\ns_lshr_b32 s{sT}, s2, 1\ns_and_b32 s{sT}, s{sT}, 3\ns_lshl_b32 s{sT}, s{sT}, 3")
    a(f"s_lshr_b32 s{sT2}, s2, 3\ns_and_b32 s{sT2}, s{sT2}, 7\ns_add_u32 s{sHead}, s{sT}, s{sT2}")
    a(f"s_lshr_b32 s{sHalf}, s{sW}, 2\ns_and_b32 s{sQb}, s{sW}, 3\ns_lshr_b32 s{sB}, s2, 6\ns_lshl_b32 s{sB}, s{sB}, 1")
    ROT=opt("rot","0")
    def order(g):
        if ROT=="0": return list(range(8))
        if ROT=="2": return [g,4+g]+[x for k in (1,2,3) for x in ((g+k)&3,4+((g+k)&3))]
        if ROT=="3": return [(g+k)&3 for k in range(4)]+[4+((g+k)&3) for k in range(4)]
        lead={0:g,1+g:4+g}; rest=[(g+k)&3 for k in (1,2,3)]+[b for b in range(4,8) if b!=4+g]
        return [lead[i] if i in lead else rest.pop(0) for i in range(8)]
    a(f"s_lshr_b32 s{sT}, s2, 6\ns_add_u32 s{sT}, s{sT}, s{sT2}\ns_and_b32 s{sT}, s{sT}, 3")
    for g in range(4):
        t=sum(b<<(4*i) for i,b in enumerate(order(g))); assert sorted(order(g))==list(range(8))
        a(f"s_mov_b32 s{sJ0}, {t:#x}" if g==0 else f"s_cmp_eq_u32 s{sT}, {g}\ns_cmov_b32 s{sJ0}, {t:#x}")
    a(f"s_add_u32 s{sB}, s{sB}, s{sHalf}")
    a(f"v_lshrrev_b32 v{vT0}, 4, v{vL}\nv_and_b32 v{vT1}, 15, v{vL}\nv_lshlrev_b32 v{vT2}, 2, v{vT0}\nv_xor_b32 v{vT1}, v{vT1}, v{vT2}")
    a(f"v_lshlrev_b32 v{vT2}, 4, v{vT1}\nv_lshl_add_u32 v{vDW}, v{vT0}, 13, v{vT2}\nv_lshl_add_u32 v{vDV}, v{vT0}, 8, v{vT2}")
    a(f"v_xor_b32 v{vT1}, s{sQb}, v{vT1}\nv_lshlrev_b32 v{vT2}, 4, v{vT1}\nv_lshl_add_u32 v{vDK}, v{vT0}, 8, v{vT2}")
    a(f"v_bfe_u32 v{vT0}, v{vL}, 2, 3\nv_lshlrev_b32 v{vT0}, 12, v{vT0}\nv_lshrrev_b32 v{vT1}, 5, v{vL}\nv_lshlrev_b32 v{vT1}, 6, v{vT1}")
    a(f"v_and_b32 v{vT2}, 3, v{vL}\nv_lshlrev_b32 v{vT2}, 4, v{vT2}\nv_add3_u32 v{vX}, v{vT0}, v{vT1}, v{vT2}")
    a(f"s_lshl_b32 s{sXo}, s{sB}, 2\ns_add_u32 s{sXo}, s{sXo}, s{sQb}\ns_lshl_b32 s{sXo}, s{sXo}, 15")
    a(f"s_lshl_b32 s{sWo}, s{sW}, 16\ns_lshl_b32 s{sT}, s{sHead}, 8\ns_add_u32 s{sWo}, s{sWo}, s{sT}")
    a(f"s_lshl_b32 s{sKV}, s{sB}, 5\ns_add_u32 s{sKV}, s{sKV}, s{sHead}\ns_lshl_b32 s{sKV}, s{sKV}, 17\ns_lshl_b32 s{sT}, s{sQb}, 12\ns_add_u32 s{sKV}, s{sKV}, s{sT}")
    a(f"s_lshl_b32 s{sLw}, s{sW}, 12\ns_lshl_b32 s{sLw2}, s{sW}, 11")
    a("s_waitcnt lgkmcnt(0)")
    a(f"s_cmp_eq_u32 s{sBr}, 1")
    srd(SW,10,20,0 if opt('nowq','0')=='1' else 0x400000); srd(SX,4,14,0 if opt('nox','0')=='1' else 0x100000)
    ksz=0 if opt('nokv','0')=='1' else 0x2000000
    srd(80,12,22,0x400000); srd(SK,6,16,ksz); srd(SV,8,18,ksz); srd(SO,28,None,0x1100000)
    def ld_w(j):
        def f(n):
            if n==0: a(f"s_bfe_u32 s{sT2}, s{sJ0}, {0x40000+4*j:#x}\ns_lshl_b32 s{sT2}, s{sT2}, 19\ns_add_u32 s{sT2}, s{sT2}, s{sWo}")
            a(f"s_add_u32 m0, s{sLw2}, {(j&3)*16384+n*1024}")
            a(f"s_add_u32 s{sT2}, s{sT2}, {n*32768}")
            a(f"buffer_load_dwordx4 v{vDW}, s[{SW}:{SW+3}], s{sT2} offen {WP} lds"); vm.issue(("W",j))
        return [lambda n=n:f(n) for n in range(2)]
    def ld_x(j):
        def f(i):
            if i==0: a(f"s_bfe_u32 s{sT2}, s{sJ0}, {0x40000+4*j:#x}\ns_lshl_b32 s{sT2}, s{sT2}, 7\ns_add_u32 s{sT2}, s{sT2}, s{sXo}")
            a(f"buffer_load_dwordx4 {vr(vXF+16*(j&3)+4*i,4)}, v{vX}, s[{SX}:{SX+3}], s{sT2} offen offset:{i*1024} {XP}"); vm.issue(("X",j))
        return [lambda i=i:f(i) for i in range(4)]
    def pf_wo():
        a(f"s_lshr_b32 s{sT2}, s2, 1\ns_lshl_b32 s{sT2}, s{sT2}, 15\ns_add_u32 s{sT2}, s{sT2}, s{sLw}\nv_lshlrev_b32 v17, 6, v{vL}")
        a(f"buffer_load_dword v18, v17, s[80:83], s{sT2} offen"); vm.issue("pf")
    seq=[("K",0)]
    for t in range(7): seq+=[("K",t+1),("V",t)]
    seq+=[("V",7)]
    slot=lambda n:((n+2)%5)*32768
    def ld_kv(n,p):
        ty,t=seq[n]
        def f():
            a(f"s_add_u32 m0, s{sLw}, {slot(n)}\ns_add_u32 s{sT}, s{sKV}, {t*16384}")
            r,v=(SK,vDK) if ty=="K" else (SV,vDV)
            a(f"buffer_load_dwordx4 v{v}, s[{r}:{r+3}], s{sT} offen offset:{p*1024} {KVP} lds"); vm.issue(("KV",n))
        return f
    KS=[int(c) for c in opt("ks","22222222")]; kq=[(n,p) for n in range(4) for p in range(4)]
    assert sum(KS)==16 and sum(KS[:6])<=12
    def kv_early(pos): return [ld_kv(*kq.pop(0)) for _ in range(KS[pos])]
    UP=int(opt("up","2"))
    w1=ld_w(1)
    for f in ld_w(0)+ld_x(0)+ld_x(1)+w1+(ld_w(2)+ld_x(2) if UP==3 else []): f()
    if opt("pfw","-")=="p": pf_wo()
    a(f"v_bfe_u32 v{vT0}, v{vL}, 2, 2\nv_lshrrev_b32 v{vT1}, 5, v{vL}\nv_bfe_u32 v{vT2}, v{vL}, 4, 1")
    a(f"v_mul_u32_u24 v{vT3}, 320, v{vT0}\nv_lshl_add_u32 v{vT3}, v{vT2}, 5, v{vT3}")
    a(f"v_lshl_add_u32 v{vVA}, v{vT1}, 13, v{vT3}\nv_and_b32 v{vT2}, 1, v{vL}\nv_lshl_add_u32 v{vVA}, v{vT2}, 4, v{vVA}\nv_bfe_u32 v{vT2}, v{vL}, 1, 1\nv_lshl_add_u32 v{vVA}, v{vT2}, 3, v{vVA}")
    for db in range(1,4): a(f"v_xor_b32 v{vVA+db}, {db*64}, v{vVA}")
    a(f"v_lshl_add_u32 v{vV0}, v{vT1}, 12, v{vT3}\nv_and_b32 v{vT2}, 3, v{vL}\nv_lshl_add_u32 v{vV0}, v{vT2}, 3, v{vV0}")
    a(f"s_lshl_b32 s{sT}, s{sHalf}, 14\nv_add_u32 v{vV0}, s{sT}, v{vV0}")
    a(f"v_lshlrev_b32 v{vK0}, 12, v{vT0}\nv_bfe_u32 v{vT3}, v{vL}, 4, 1\nv_lshl_add_u32 v{vK0}, v{vT3}, 10, v{vK0}\nv_lshl_add_u32 v{vK0}, v{vT2}, 8, v{vK0}")
    a(f"v_lshl_add_u32 v{vT3}, v{vT2}, 2, v{vT0}\nv_xor_b32 v{vT3}, v{vT3}, v{vT1}\nv_lshl_add_u32 v{vK0}, v{vT3}, 4, v{vK0}\nv_add_u32 v{vK0}, s{sT}, v{vK0}")
    for r,v in ((sEv,0x55555555),(sOd,0xaaaaaaaa),(sLo,0x33333333),(sHi,0xcccccccc)): a(f"s_mov_b32 s{r}, {v:#x}\ns_mov_b32 s{r+1}, {v:#x}")
    a(f"s_mov_b32 s{sC}, 0x3e0293ee")
    if opt("prio","0")=="1": a(f"s_cmp_eq_u32 s{sHalf}, 0\ns_cbranch_scc1 L1_noprio\ns_setprio 1\nL1_noprio:")
    def tr_ops(j):
        X=vXF+16*(j&3); r=[]
        for src,dst,bit,mk,mo,perm in ((X,vXT,1,sEv,sOd,"[1,0,3,2]"),(vXT,X,2,sLo,sHi,"[2,3,0,1]")):
            for m,want in ((mk,0),(mo,bit)):
                pre=f"s_mov_b64 vcc, s[{m}:{m+1}]\n"
                for i in range(4):
                    if (i&bit)!=want: continue
                    for d in range(4):
                        r.append(pre+f"v_cndmask_b32_dpp v{dst+4*i+d}, v{src+4*(i^bit)+d}, v{src+4*i+d}, vcc quad_perm:{perm} row_mask:0xf bank_mask:0xf"); pre=""
        return r
    segs=[("W",j) for j in range(8)]+[("KV",n) for n in range(16)]
    abase={"K":None,"V":None}
    def set_addr(sg):
        if sg[0]=="W": return []
        ty,t=seq[sg[1]]; b=slot(sg[1])&~0xffff
        if abase[ty]==b: return []
        abase[ty]=b
        if ty=="K": return [f"v_add_u32 v{vKA}, {b}, v{vK0}"]+[f"v_xor_b32 v{vKA+s}, {s<<5}, v{vKA}" for s in range(1,8)]
        return [f"v_add_u32 v{vVA}, {b}, v{vV0}"]+[f"v_xor_b32 v{vVA+d}, {d*64}, v{vVA}" for d in range(1,4)]
    vNM=240; Sb=lambda t:vS+32*(t&1); Pb=lambda t:vNM if t==7 else vP
    def idx(sg,i): return (i&3,i>>2) if sg in (("W",7),("KV",15)) else (i>>2,i&3)
    def rd(sg,i):
        F=vF+4*(i&7); ks,db=idx(sg,i)
        if sg[0]=="W":
            for r in range(2): a(f"ds_read_b64_tr_b16 {vr(F+2*r,2)}, v{vVA+db} offset:{(sg[1]&3)*16384+(8*ks+4*r)*256}"); lg.issue((sg,i))
            return
        ty,t=seq[sg[1]]; off=slot(sg[1])&0xffff
        if ty=="K": a(f"ds_read_b128 {vr(F,4)}, v{vKA+(i&7)} offset:{off+(i>>3)*2048}"); lg.issue((sg,i))
        else:
            for r in range(2): a(f"ds_read_b64_tr_b16 {vr(F+2*r,2)}, v{vVA+db} offset:{off+(32*r+4*ks)*256}"); lg.issue((sg,i))
    def mm(sg,i):
        F=vF+4*(i&7); ks,db=idx(sg,i)
        if sg[0]=="W": mfma(vO+16*db,F,vXF+16*(sg[1]&3)+4*ks,"0" if sg[1]==0 and ks==0 else vO+16*db); return
        ty,t=seq[sg[1]]
        if ty=="K": mfma(Sb(t)+16*(i>>3),F,vQ+4*(i&7),("0" if t==0 else vNM) if (i&7)==0 else Sb(t)+16*(i>>3))
        else: mfma(vO+16*db,F,Pb(t)+4*ks,"0" if t==0 and ks==0 else vO+16*db)
    def max_a(S): return [f"v_max3_f32 v{vT0}, v{S}, v{S+1}, v{S+2}"]+[f"v_max3_f32 v{vT0}, v{S+i}, v{S+i+1}, v{vT0}" for i in range(3,15,2)]
    def max_b(S): return [f"v_max3_f32 v{vT1}, v{S+16}, v{S+17}, v{S+15}"]+[f"v_max3_f32 v{vT1}, v{S+i}, v{S+i+1}, v{vT1}" for i in range(18,32,2)]+[f"v_max_f32 v{vT0}, v{vT0}, v{vT1}"]
    xh=f"v_mov_b32 v{vT1}, v{vT0}\ns_nop 1\nv_permlane32_swap_b32 v{vT0}, v{vT1}\ns_nop 1\nv_max_f32 v{vT0}, v{vT0}, v{vT1}"
    def check(t):
        S=Sb(t); r=f"v_cmp_lt_f32 vcc, 0x41000000, v{vT0}\ns_nop 0\ns_cbranch_vccz L1_ok{t}\n{xh}\nv_cmp_lt_f32 vcc, 0x41000000, v{vT0}\ns_nop 1\n"
        r+=f"v_cndmask_b32 v{vT0}, 0, v{vT0}, vcc\nv_exp_f32 v{vAl}, -v{vT0}\n"
        r+="".join(f"v_sub_f32 v{S+i}, v{S+i}, v{vT0}\n" for i in range(32))+"".join(f"v_sub_f32 v{vNM+i}, v{vNM+i}, v{vT0}\n" for i in range(16))
        return r+f"v_mul_f32 v{vLs}, v{vAl}, v{vLs}\nv_mul_f32 v{vLs2}, v{vAl}, v{vLs2}\nL1_ok{t}:"
    NE=int(opt("ne","16"))
    def cvt(t,i): return f"v_cvt_pk_bf16_f32 v{Pb(t)+i//2}, v{Sb(t)+i}, v{Sb(t)+i+1}"
    def sm(t,lo,hi,pack,extra=[]):
        S=Sb(t); r=[]; extra=list(extra)
        for i in range(lo,hi+2,2):
            if i<hi:
                if t==0: r+=[f"v_sub_f32 v{S+k}, v{S+k}, v{vT0}" for k in (i,i+1)]
                r+=[f"v_exp_f32 v{S+k}, v{S+k}" for k in (i,i+1)]
            if extra: r.append(extra.pop(0))
            if i>lo:
                p=i-2
                if t==0 and p==0: r+=[f"v_mov_b32 v{vLs}, v{S}",f"v_mov_b32 v{vLs2}, v{S+1}"]
                else: r+=[f"v_add_f32 v{vLs}, v{vLs}, v{S+p}",f"v_add_f32 v{vLs2}, v{vLs2}, v{S+p+1}"]
                if pack: r.append(cvt(t,p))
        return r+extra
    def qcv(db): return [x for i in range(8) for x in (f"v_mul_f32 v{vO+16*db+2*i}, s{sC}, v{vO+16*db+2*i}",f"v_mul_f32 v{vO+16*db+2*i+1}, s{sC}, v{vO+16*db+2*i+1}")]+[f"v_cvt_pk_bf16_f32 v{vQ+8*db+i}, v{vO+16*db+2*i}, v{vO+16*db+2*i+1}" for i in range(8)]
    def ofin(db):
        r=[]
        for f in (2*db,2*db+1):
            r+=[f"v_mul_f32 v{vO+8*f+i}, v{vT0}, v{vO+8*f+i}" for i in range(8)]+[f"v_cvt_pk_bf16_f32 v{vS+4*f+i}, v{vO+8*f+2*i}, v{vO+8*f+2*i+1}" for i in range(4)]
            r.append(f"buffer_store_dwordx4 {vr(vS+4*f,4)}, v{vT3}, s[{SO}:{SO+3}], s{sT if f<4 else sT2} offen offset:{(f&3)*1024} {OSP}")
        return r
    lsum=[f"v_add_f32 v{vLs}, v{vLs}, v{vLs2}",f"v_lshlrev_b32 v{vT3}, 4, v{vL}",f"v_mov_b32 v{vT1}, v{vLs}\ns_nop 1\nv_permlane32_swap_b32 v{vLs}, v{vT1}\ns_nop 1\nv_add_f32 v{vLs}, v{vLs}, v{vT1}",f"v_rcp_f32 v{vT0}, v{vLs}",
      f"s_lshl_b32 s{sT}, s{sBr}, 3\ns_add_u32 s{sT}, s{sT}, s{sB}\ns_lshl_b32 s{sT}, s{sT}, 2\ns_add_u32 s{sT}, s{sT}, s{sQb}\ns_lshl_b32 s{sT}, s{sT}, 5\ns_add_u32 s{sT}, s{sT}, s{sHead}\ns_lshl_b32 s{sT}, s{sT}, 13\ns_add_u32 s{sT2}, s{sT}, 4096"]
    cost=lambda s: 2 if s.startswith("v_exp") else 1
    at=lambda e,l:[(e,x) for x in l]
    LSP=int(opt("lsp","4")); pend={}
    vm.wait([("W",0),("X",0)]); a("s_barrier"); stamp()
    for i in range(PD): rd(segs[0],i)
    l0=ld_w(2)+ld_x(2) if UP==2 else []
    if opt("pfw","-")=="q": l0.append(pf_wo)
    for k,s_ in enumerate(tr_ops(0)):
        a(s_)
        if k%4==0 and l0: l0.pop(0)()
    a("s_nop 1")
    for si,sg in enumerate(segs):
        nxt=segs[si+1] if si+1<len(segs) else None
        fill=[]; start=0; last=14; ty=None
        def sched(l,g0,sp):
            for k,f in enumerate(l): pend.setdefault(16*si+g0+int(k*sp),[]).append(f)
        if sg[0]=="W":
            j=sg[1]
            if j<7: vm.wait([("X",j+1)]); fill=at(0,tr_ops(j+1))
            else: fill=at(5,qcv(0))+at(9,qcv(1))+at(13,qcv(2)); start=5; last=15
            if j+3<8: sched(ld_x(j+3),0,2)
            l=(ld_w(j+3) if j+3<8 else [])+kv_early(j)+([pf_wo] if str(j)==opt("pfw","-") else [])
            if l: sched(l,BAR,(16-BAR)/len(l))
            if j==3: sched([lambda:a(f"s_cmp_lg_u32 s{sW}, 0\ns_cbranch_scc1 LF_nc\ns_lshl_b32 s62, s2, 8\ns_add_u32 s62, s62, 0x1000000\nv_mov_b32 v17, 0\nv_lshlrev_b32 v18, 2, v{vL}\nbuffer_store_dword v17, v18, s[{SO}:{SO+3}], s62 offen sc1\nLF_nc:")],8,1)
        else:
            n=sg[1]; ty,t=seq[n]
            if n+4<16: sched([ld_kv(n+4,p) for p in range(4)],BAR,LSP)
            if opt("pfw","-")=="k%d"%n: sched([pf_wo],BAR,1)
            if n==0: fill=at(1,qcv(3))+at(10,max_a(Sb(0))); start=1; last=4
            elif n==1: fill=at(0,sm(0,0,32,True))
            elif ty=="K": fill=at(0,sm(t-1,NE,32,True,[cvt(t-1,i) for i in range(0,NE,2)]))
            elif t<7:
                fill=at(0,max_a(Sb(t+1)))+at(2,max_b(Sb(t+1))+[check(t+1)]+(sm(t+1,0,NE,False) if t<6 else sm(7,0,32,True))); last=15
            else:
                setup,pre,main=tile_parts()
                def first(): a("s_mov_b32 s98, s2"); setup(); a("s_barrier")
                PRE=opt("pre","v"); sched([first],0,1)
                if PRE=="v": sched(pre,1,float(opt("psp","0.5")))
                fill=at(0,lsum)+at(5,ofin(0))+at(9,ofin(1))+at(13,ofin(2)); last=15
        if opt("nofill","0")=="1": fill=[]
        if opt("nold","0")=="1": pend.clear()
        tot=sum(cost(x) for e,x in fill); acc=0
        for i in range(16):
            lg.wait([(sg,i)]); mm(sg,i)
            if i+PD<16: rd(sg,i+PD)
            elif nxt: rd(nxt,i+PD-16)
            if i==BAR and nxt:
                for s_ in set_addr(nxt): a(s_)
                vm.wait([nxt]); a("s_barrier" if opt("nobar","0")=="0" else "")
            for f in pend.pop(16*si+i,[]): f()
            while fill and i>=max(start,fill[0][0]) and acc<tot*(i+1-start)/(last+1-start):
                x=fill.pop(0)[1]; acc+=cost(x); a(x)
        assert not fill
        if sg==("KV",0):
            a("s_nop 7\ns_nop 3")
            for s_ in max_b(Sb(0))+[xh]+[f"v_sub_f32 v{vNM+i}, 0, v{vT0}" for i in range(16)]+["s_nop 1"]: a(s_)
        if ty=="V" and t<7:
            a(f"s_cbranch_vccz L1_nr{t}\ns_nop 7\ns_nop 3")
            for i in range(64): a(f"v_mul_f32 v{vO+i}, v{vAl}, v{vO+i}")
            a(f"L1_nr{t}:")
            if t==6: a("s_nop 1")
        if ST and (opt("st","0")=="1" or si in (0,6,9,21,23)): lg.done=len(lg.q); stamp()
    assert not pend
    a("s_nop 7")
    for s_ in ofin(3): a(s_)
    sG,sC_,sN=72,73,74; POL=opt("pol","sc1").replace("_"," "); SH=int(opt("sh","5"))
    a(f"s_mov_b32 s68, s26\ns_mov_b32 s69, s27\ns_mov_b32 s70, 256\ns_mov_b32 s71, 0x00020000")
    a(f"s_lshl_b32 s{sC_}, s{sBr}, 2\ns_lshr_b32 s{sG}, s2, 6\ns_add_u32 s{sG}, s{sG}, s{sC_}\ns_lshl_b32 s{sG}, s{sG}, {SH}")
    a(f"s_bfe_u32 s{sN}, s2, 0x20001\ns_add_u32 s{sC_}, s{sC_}, s{sN}\ns_lshl_b32 s{sC_}, s{sC_}, {SH}\ns_mov_b32 s{sN}, {int(opt('spin','4000'))}")
    a(f"v_mov_b32 v11, 1\nv_mov_b32 v9, 0x10000")
    stamp(); a("s_waitcnt vmcnt(0)"); stamp()
    if PRE=="e":
        for f in pre: f()
    a(f"s_barrier\ns_cmp_lg_u32 s{sW}, 0\ns_cbranch_scc1 LF_wait")
    MB=opt("mb","1")
    a(f"s_lshr_b32 s63, s2, 6\ns_lshl_b32 s63, s63, 1\ns_add_u32 s63, s63, s{sBr}\ns_lshl_b32 s63, s63, 8\ns_add_u32 s63, s63, 0x1000000\nv_lshlrev_b32 v7, 11, v{vL}\nv_mov_b32 v8, 1\nv_lshlrev_b32 v10, 2, v{vL}")
    arr=f"s_mov_b64 exec, 1\nbuffer_atomic_add v11, off, s[68:71], s{sG} sc0 sc1"
    snd=f"s_mov_b32 exec_lo, -1\ns_mov_b32 exec_hi, 0\nbuffer_store_dword v8, v7, s[{SO}:{SO+3}], s63 offen sc1"
    if MB=="1": a(f"{arr}\ns_waitcnt vmcnt(0)\nv_readfirstlane_b32 s78, v11\ns_nop 2\ns_and_b32 s78, s78, 0xffff\ns_cmp_lg_u32 s78, 31\ns_cbranch_scc1 LF_poll1\n{snd}\ns_mov_b64 exec, 1\ns_branch LF_poll1")
    else: a(f"s_lshl_b32 s78, s{sHead}, 2\ns_add_u32 s63, s63, s78\n{snd}\ns_branch LF_poll1")
    a(f"LF_poll:\ns_mov_b32 s78, {int(opt('bo','2'))}\nLF_bo:\ns_nop 15\ns_nop 15\ns_nop 15\ns_sub_u32 s78, s78, 1\ns_cmp_lg_u32 s78, 0\ns_cbranch_scc1 LF_bo")
    a(f"LF_poll1:\nbuffer_load_dword v6, v10, s[{SO}:{SO+3}], s62 offen {POL}\ns_waitcnt vmcnt(0)\nv_cmp_ne_u32 vcc, 1, v6\ns_nop 3")
    a(f"s_cmp_eq_u64 vcc, 0\ns_cselect_b32 s77, 1, 0\ns_cbranch_scc1 LF_go\ns_sub_u32 s{sN}, s{sN}, 1\ns_cmp_lg_u32 s{sN}, 0\ns_cbranch_scc1 LF_poll")
    a((f"{arr}\n" if MB=="2" else "")+f"v_mov_b32 v6, v9\nbuffer_atomic_add v6, off, s[68:71], s{sC_} sc0 sc1\ns_waitcnt vmcnt(0)\nv_readfirstlane_b32 s78, v6\ns_nop 2\ns_and_b32 s78, s78, 0xffff\ns_cmp_eq_u32 s78, 32\ns_cselect_b32 s77, 1, 0\ns_branch LF_go2")
    a(f"LF_go:\n"+(f"{arr}\n" if MB=="2" else "")+f"LF_go2:\nv_mov_b32 v8, s77\nds_write_b32 v9, v8\ns_waitcnt lgkmcnt(0)\ns_mov_b64 exec, -1")
    a("LF_wait:\ns_barrier"+("\nv_mov_b32 v150, v19\ns_branch LF_end" if opt("notile","0")=="1" else ""))
    a(f"ds_read_b32 v8, v9\ns_mov_b32 s61, 0\ns_waitcnt lgkmcnt(0)\nv_readfirstlane_b32 s77, v8\ns_nop 2\ns_cmp_eq_u32 s77, 1\ns_cbranch_scc1 LF_mid\ns_waitcnt vmcnt(0)")
    a(f"LF_next:\ns_cmp_lg_u32 s61, 0\ns_cbranch_scc1 LF_more\nv_mov_b32 v10, 0x10004\ns_cmp_lg_u32 s{sW}, 0\ns_cbranch_scc1 LF_wait2")
    a(f"s_mov_b64 exec, 1\nds_write_b32 v10, v11\ns_waitcnt lgkmcnt(0)\ns_mov_b64 exec, -1\nLF_wait2:\ns_barrier\nds_read_b32 v8, v10\ns_waitcnt lgkmcnt(0)\nv_readfirstlane_b32 s77, v8\ns_nop 2")
    a(f"s_cmp_lt_u32 s77, 0x10000\ns_cbranch_scc1 LF_end\ns_and_b32 s77, s77, 0xffff\ns_cmp_lg_u32 s77, 31\ns_cbranch_scc1 LF_end")
    a(f"LF_more:\ns_cmp_eq_u32 s61, 32\ns_cbranch_scc1 LF_end\ns_waitcnt vmcnt(0)")
    a(f"s_lshr_b32 s98, s2, 6\ns_lshl_b32 s98, s98, 1\ns_add_u32 s98, s98, s{sBr}\ns_lshl_b32 s78, s61, 3\ns_add_u32 s98, s98, s78\ns_add_u32 s61, s61, 1\ns_barrier")
    setup()
    for f in pre: f()
    a("s_waitcnt vmcnt(0)\nLF_mid:"); stamp(); a("v_mov_b32 v150, v19" if ST else ""); STV[0]=150; main(); a("s_branch LF_next\nLF_end:\ns_waitcnt vmcnt(0)"); stamp_out(0,6,sW)
    a("L1_end:\ns_endpgm")
def tile_parts():
    SW,SO,SD=32,36,40
    sW=52; sBr,sRt,sCt,sT,sT2,sO0,sO1,sWo,sLw=range(84,93); sWb,sTb,sOb0,sOb1,sId=93,94,100,101,98
    vL,vOA,vDW,vA0,vA1,vT0,vT1,vT2,vT3=1,2,3,4,5,6,7,8,9
    vAcc=12; vWF=76; vOF=92; D=int(opt("d","8")); BAR2=opt("bar","0")=="1"; ORD=opt("ord","0")
    def order(g):
        if ORD=="0": return list(range(16))
        if ORD=="2": return [(i&8)|((i+2*g)&7) for i in range(16)]
        if ORD=="3": return [(i&12)|((i+g)&3) for i in range(16)]
        lead={0:g}; lead.update({1+g+4*k:4+g+4*k for k in range(3)}); rest=[b for b in range(16) if b%4!=g]
        if ORD=="4": rest[0:3]=[(g+k)&3 for k in (1,2,3)]
        return [lead[i] if i in lead else rest.pop(0) for i in range(16)]
    def setup():
        a(f"s_and_b32 s{sBr}, s{sId}, 1\ns_lshr_b32 s{sT}, s{sId}, 1\ns_and_b32 s{sT}, s{sT}, 3\ns_lshl_b32 s{sT}, s{sT}, 2\ns_lshr_b32 s{sT2}, s{sId}, 3\ns_and_b32 s{sT2}, s{sT2}, 3\ns_add_u32 s{sRt}, s{sT}, s{sT2}\ns_lshr_b32 s{sCt}, s{sId}, 5")
        a(f"v_lshlrev_b32 v{vOA}, 4, v{vL}")
        a(f"v_lshrrev_b32 v{vT0}, 3, v{vL}\nv_and_b32 v{vT1}, 7, v{vL}\nv_bfe_u32 v{vT2}, v{vL}, 4, 1\nv_lshlrev_b32 v{vT2}, 2, v{vT2}\nv_xor_b32 v{vT1}, v{vT1}, v{vT2}\nv_lshlrev_b32 v{vT1}, 4, v{vT1}\nv_lshl_add_u32 v{vDW}, v{vT0}, 10, v{vT1}")
        a(f"s_cmp_eq_u32 s{sBr}, 1")
        srd(SW,12,22,0 if opt('nowo','0')=='1' else 0x400000); srd(SO,28,None,0 if opt('noo','0')=='1' else 0x1000000); srd(SD,24,None,0x200000)
        a(f"s_lshl_b32 s{sO0}, s{sBr}, 4\ns_add_u32 s{sO0}, s{sO0}, s{sRt}\ns_lshl_b32 s{sO0}, s{sO0}, 19\ns_lshl_b32 s{sT}, s{sW}, 15\ns_add_u32 s{sO0}, s{sO0}, s{sT}\ns_add_u32 s{sO1}, s{sO0}, 0x40000")
        a(f"s_lshl_b32 s{sWo}, s{sW}, 19\ns_lshl_b32 s{sT}, s{sCt}, 7\ns_add_u32 s{sWo}, s{sWo}, s{sT}\ns_lshr_b32 s{sT}, s{sW}, 2\ns_lshl_b32 s{sT}, s{sT}, 1\ns_add_u32 s{sT}, s{sT}, s{sW}\ns_lshl_b32 s{sLw}, s{sT}, 14")
        a(f"s_add_u32 s{sT}, s{sRt}, s{sCt}\ns_and_b32 s{sT}, s{sT}, 3")
        for g in range(4):
            t=sum(b<<(4*i) for i,b in enumerate(order(g))); assert sorted(order(g))==list(range(16))
            if g==0: a(f"s_mov_b32 s{sTb}, {t&0xffffffff:#x}\ns_mov_b32 s{sTb+1}, {t>>32:#x}")
            else: a(f"s_cmp_eq_u32 s{sT}, {g}\ns_cmov_b32 s{sTb}, {t&0xffffffff:#x}\ns_cmov_b32 s{sTb+1}, {t>>32:#x}")
        a(f"v_bfe_u32 v{vT0}, v{vL}, 2, 2\nv_lshrrev_b32 v{vT1}, 5, v{vL}\nv_lshl_add_u32 v{vT1}, v{vT1}, 2, v{vT0}\nv_lshlrev_b32 v{vA0}, 7, v{vT1}")
        a(f"v_lshrrev_b32 v{vT0}, 1, v{vT0}\nv_lshl_add_u32 v{vA0}, v{vT0}, 6, v{vA0}\nv_and_b32 v{vT0}, 1, v{vL}\nv_lshl_add_u32 v{vA0}, v{vT0}, 5, v{vA0}")
        a(f"v_bfe_u32 v{vT0}, v{vL}, 4, 1\nv_lshl_add_u32 v{vA0}, v{vT0}, 4, v{vA0}\nv_bfe_u32 v{vT0}, v{vL}, 1, 1\nv_lshl_add_u32 v{vA0}, v{vT0}, 3, v{vA0}")
        a(f"v_add_u32 v{vA0}, s{sLw}, v{vA0}\nv_xor_b32 v{vA1}, 64, v{vA0}")
    vm=Cnt("vmcnt",63)
    def ldw(s,n):
        if s%2==0 and n==0: a(f"s_bfe_u32 s{sT}, s{sTb+(s>>4)}, {0x40000+4*((s>>1)&7):#x}\ns_lshl_b32 s{sWb}, s{sT}, 15\ns_add_u32 s{sWb}, s{sWb}, s{sWo}")
        a(f"s_add_u32 m0, s{sLw}, {(s%D)*2048+n*1024}\ns_add_u32 s{sT}, s{sWb}, {(16*(s&1)+8*n)*1024}")
        a(f"buffer_load_dwordx4 v{vDW}, s[{SW}:{SW+3}], s{sT} offen {WOP} lds")
    def ldo(s):
        if s%2==0: a(f"s_bfe_u32 s{sT}, s{sTb+(s>>4)}, {0x40000+4*((s>>1)&7):#x}\ns_lshl_b32 s{sT}, s{sT}, 11\ns_add_u32 s{sOb0}, s{sO0}, s{sT}\ns_add_u32 s{sOb1}, s{sO1}, s{sT}")
        for rb in range(2): a(f"buffer_load_dwordx4 {vr(vOF+8*(s%D)+4*rb,4)}, v{vOA}, s[{SO}:{SO+3}], s{sOb1 if rb else sOb0} offen offset:{(s&1)*1024} {OLP}"); vm.issue(s)
    def load(s):
        if BAR2 and s%2==0: a("s_barrier")
        for n in range(2): ldw(s,n); vm.issue(s)
        ldo(s)
    pre=[lambda s=s,n=n:ldw(s,n) for s in range(D) for n in range(2)]
    def wread(s):
        for nb in range(2):
            for rd in range(2): a(f"ds_read_b64_tr_b16 {vr(vWF+(s&1)*8+nb*4+rd*2,2)}, v{vA1 if nb else vA0} offset:{(s%D)*2048+rd*1024}")
    def main():
        NS=32
        for s in range(D):
            if BAR2 and s and s%2==0: a('s_barrier')
            ldo(s)
        vm.wait([0]); wread(0)
        for s in range(NS):
            if s+1<NS:
                vm.wait([s+1]); wread(s+1); a("s_waitcnt lgkmcnt(4)")
            else: a("s_waitcnt lgkmcnt(0)")
            for nb in range(2):
                for rb in range(2): mfma(vAcc+16*(2*nb+rb), vWF+(s&1)*8+nb*4, vOF+8*(s%D)+4*rb, "0" if s==0 else vAcc+16*(2*nb+rb))
            if s%8==0: stamp()
            if s+D<NS: load(s+D)
        a(f"v_add_u32 v{vT0}, s{sLw}, v{vOA}\ns_lshl_b32 s{sT}, s{sW}, 11\nv_add_u32 v{vT1}, s{sT}, v{vOA}\nv_add_u32 v{vT2}, 0x18000, v{vT1}\ns_nop 7")
        for p in range(16): a(f"ds_write_b128 v{vT0}, {vr(vAcc+4*p,4)} offset:{p*1024}")
        a("s_waitcnt lgkmcnt(0)"); stamp(); a("s_barrier"); stamp()
        for w in range(8):
            for p in range(2): a(f"ds_read_b128 {vr(vAcc+8*w+4*p,4)}, v{vT1 if w<4 else vT2} offset:{(w&3)*16384+p*1024}")
        a(f"v_and_b32 v{vT0}, 31, v{vL}\nv_lshlrev_b32 v{vT0}, 11, v{vT0}\nv_lshrrev_b32 v{vT3}, 5, v{vL}\nv_lshl_add_u32 v{vT0}, v{vT3}, 5, v{vT0}")
        a(f"s_lshl_b32 s{sT}, s{sRt}, 1\ns_bfe_u32 s{sT2}, s{sW}, 0x10001\ns_add_u32 s{sT}, s{sT}, s{sT2}\ns_lshl_b32 s{sT}, s{sT}, 16")
        a(f"s_lshl_b32 s{sT2}, s{sBr}, 10\ns_add_u32 s{sT}, s{sT}, s{sT2}\ns_lshl_b32 s{sT2}, s{sCt}, 7\ns_add_u32 s{sT}, s{sT}, s{sT2}")
        a(f"s_lshr_b32 s{sT2}, s{sW}, 2\ns_lshl_b32 s{sT2}, s{sT2}, 6\ns_add_u32 s{sT}, s{sT}, s{sT2}\ns_and_b32 s{sT2}, s{sW}, 1\ns_lshl_b32 s{sT2}, s{sT2}, 4\ns_add_u32 s{sT}, s{sT}, s{sT2}")
        for w in range(1,8):
            a(f"s_waitcnt lgkmcnt({14-2*w})")
            for i in range(8): a(f"v_add_f32 v{vAcc+i}, v{vAcc+i}, v{vAcc+8*w+i}")
        for i in range(4): a(f"v_cvt_pk_bf16_f32 v{vWF+i}, v{vAcc+2*i}, v{vAcc+2*i+1}")
        a(f"buffer_store_dwordx4 {vr(vWF,4)}, v{vT0}, s[{SD}:{SD+3}], s{sT} offen {OUTP}")
    return setup,pre,main
kernel1()
a('.section .rodata,"a"\n.p2align 6'); a(desc(K1,256))
print("\n".join(o))
```

```python
import sys, os
NAME="concat_heads__mha_block_cached__gqa_block_cached__near_ridge"
OPT=dict(a.split("=") for a in sys.argv[1:] if "=" in a)
def opt(k,d): return OPT.get(k,d)
KVP=opt("kv","nt"); WP=opt("w",""); XP=opt("x",""); OSP=opt("os",""); OLP=opt("ol",""); WOP=opt("wo",""); OUTP=opt("out","")
o=[]
def a(s): o.append(s)
def vr(b,n): return f"v[{b}:{b+n-1}]"
def desc(name,vg):
    return f'''.amdhsa_kernel {name}
  .amdhsa_next_free_vgpr {vg}
  .amdhsa_next_free_sgpr 102
  .amdhsa_accum_offset {vg}
  .amdhsa_group_segment_fixed_size 0
  .amdhsa_kernarg_size 104
  .amdhsa_user_sgpr_count 2
  .amdhsa_user_sgpr_kernarg_segment_ptr 1
  .amdhsa_system_sgpr_workgroup_id_x 1
.end_amdhsa_kernel'''
def head(name): a(f".globl {name}\n.p2align 8\n.type {name},@function\n{name}:")
def srd(d,a_lo,b_lo,size):
    if b_lo is None: a(f"s_mov_b32 s{d}, s{a_lo}\ns_mov_b32 s{d+1}, s{a_lo+1}")
    else: a(f"s_cselect_b32 s{d}, s{b_lo}, s{a_lo}\ns_cselect_b32 s{d+1}, s{b_lo+1}, s{a_lo+1}")
    a(f"s_mov_b32 s{d+2}, {size:#x}\ns_mov_b32 s{d+3}, 0x00020000")
def mfma(d,x,y,c): a(f"v_mfma_f32_32x32x16_bf16 {vr(d,16)}, {vr(x,4)}, {vr(y,4)}, {c if isinstance(c,str) else vr(c,16)}")
ST=opt("st","0")!="0"
def stamp(real=False):
    if not ST: return
    a(f"{'s_memrealtime' if real else 's_memtime'} s[96:97]\ns_waitcnt lgkmcnt(0)\ns_mov_b32 m0, s99\ns_add_u32 s99, s99, 1\nv_writelane_b32 v{STV[0]}, s96, m0")
STV=[0]
def stamp_init(v):
    STV[0]=v
    if ST: a(f"s_mov_b32 s99, 0\nv_mov_b32 v{v}, 0"); stamp(True); stamp()
def stamp_out(k,vt,sw):
    if not ST: return
    stamp(); stamp(True)
    a(f"s_mov_b32 s92, s28\ns_mov_b32 s93, s29\ns_mov_b32 s94, 0x10000000\ns_mov_b32 s95, 0x20000")
    a(f"s_lshl_b32 s96, s2, 3\ns_add_u32 s96, s96, s{sw}\ns_lshl_b32 s96, s96, 8\ns_add_u32 s96, s96, {0x2000000+k*0x80000}")
    a(f"v_and_b32 v{vt}, 63, v0\nv_lshlrev_b32 v{vt}, 2, v{vt}\nbuffer_store_dword v{STV[0]}, v{vt}, s[92:95], s96 offen\ns_waitcnt vmcnt(0)")
K1=NAME+"_kernel"; K2=NAME+"_oproj_kernel"
a(open("cdna_kernels/"+NAME+".s.ref").read().split("; Override")[0].rstrip())
a(f"; @launch grid=(256,1,1) block=(512,1,1) lds=163840")
a('.amdgcn_target "amdgcn-amd-amdhsa--gfx950"\n.text')
def ptrs():
    if opt("bad","0")=="1": a("s_and_b32 s3, s2, 7\ns_lshl_b32 s3, s3, 5\ns_lshr_b32 s2, s2, 3\ns_or_b32 s2, s2, s3")
    a("s_load_dwordx16 s[4:19], s[0:1], 0\ns_load_dwordx8 s[20:27], s[0:1], 64\ns_load_dwordx2 s[28:29], s[0:1], 96")
class Cnt:
    def __init__(s,name,mx): s.q=[]; s.name=name; s.mx=mx; s.done=0
    def issue(s,tag): s.q.append(tag)
    def wait(s,tags):
        idx=[i for i,t in enumerate(s.q) if t in tags]
        if not idx or idx[-1]<s.done: return
        n=len(s.q)-1-idx[-1]
        if n>s.mx: n=s.mx
        s.done=len(s.q)-n
        a(f"s_waitcnt {s.name}({n})")
def kernel1():
    head(K1)
    a("s_cmp_ge_u32 s2, 256\ns_cbranch_scc1 L1_end")
    stamp_init(19)
    if opt("dbg","0")=="1": a("s_memtime s[84:85]\ns_memrealtime s[86:87]")
    ptrs()
    SX,SK,SV,SW,SO=32,36,40,44,48
    sW,sHalf,sQb,sHead,sB,sBr=52,53,54,55,56,57
    sKV,sT,sT2,sC,sLw,sLw2,sJ0,sAny=58,59,60,64,65,66,67,78
    sEv,sOd,sLo,sHi=68,70,72,74
    sXo,sWo=76,77
    vL,vDK,vDV,vDW,vX,vK0,vV0,vW0=1,2,3,4,5,6,7,8
    vM,vLs,vLs2,vAl,vT0,vT1,vT2,vT3=9,10,11,12,13,14,15,16
    vVA=20; vKA=24
    vQ=32; vO=64; vS=128; vE=160; vP=192; vF=208
    vXF=128; vXT=192
    PD=int(opt("pd","6")); BAR=15-PD
    vm=Cnt("vmcnt",63); lg=Cnt("lgkmcnt",15)
    a(f"v_lshrrev_b32 v{vT0}, 6, v0\nv_and_b32 v{vL}, 63, v0\nv_readfirstlane_b32 s{sW}, v{vT0}")
    a(f"s_and_b32 s{sBr}, s2, 1\ns_lshr_b32 s{sT}, s2, 1\ns_and_b32 s{sT}, s{sT}, 3\ns_lshl_b32 s{sT}, s{sT}, 3")
    a(f"s_lshr_b32 s{sT2}, s2, 3\ns_and_b32 s{sT2}, s{sT2}, 7\ns_add_u32 s{sHead}, s{sT}, s{sT2}")
    a(f"s_lshr_b32 s{sHalf}, s{sW}, 2\ns_and_b32 s{sQb}, s{sW}, 3\ns_lshr_b32 s{sB}, s2, 6\ns_lshl_b32 s{sB}, s{sB}, 1")
    ROT=opt("rot","0")
    def order(g):
        if ROT=="0": return list(range(8))
        if ROT=="2": return [g,4+g]+[x for k in (1,2,3) for x in ((g+k)&3,4+((g+k)&3))]
        if ROT=="3": return [(g+k)&3 for k in range(4)]+[4+((g+k)&3) for k in range(4)]
        lead={0:g,1+g:4+g}; rest=[(g+k)&3 for k in (1,2,3)]+[b for b in range(4,8) if b!=4+g]
        return [lead[i] if i in lead else rest.pop(0) for i in range(8)]
    a(f"s_lshr_b32 s{sT}, s2, 6\ns_add_u32 s{sT}, s{sT}, s{sT2}\ns_and_b32 s{sT}, s{sT}, 3")
    for g in range(4):
        t=sum(b<<(4*i) for i,b in enumerate(order(g))); assert sorted(order(g))==list(range(8))
        a(f"s_mov_b32 s{sJ0}, {t:#x}" if g==0 else f"s_cmp_eq_u32 s{sT}, {g}\ns_cmov_b32 s{sJ0}, {t:#x}")
    a(f"s_add_u32 s{sB}, s{sB}, s{sHalf}")
    a(f"v_lshrrev_b32 v{vT0}, 4, v{vL}\nv_and_b32 v{vT1}, 15, v{vL}\nv_lshlrev_b32 v{vT2}, 2, v{vT0}\nv_xor_b32 v{vT1}, v{vT1}, v{vT2}")
    a(f"v_lshlrev_b32 v{vT2}, 4, v{vT1}\nv_lshl_add_u32 v{vDW}, v{vT0}, 13, v{vT2}\nv_lshl_add_u32 v{vDV}, v{vT0}, 8, v{vT2}")
    a(f"v_xor_b32 v{vT1}, s{sQb}, v{vT1}\nv_lshlrev_b32 v{vT2}, 4, v{vT1}\nv_lshl_add_u32 v{vDK}, v{vT0}, 8, v{vT2}")
    a(f"v_bfe_u32 v{vT0}, v{vL}, 2, 3\nv_lshlrev_b32 v{vT0}, 12, v{vT0}\nv_lshrrev_b32 v{vT1}, 5, v{vL}\nv_lshlrev_b32 v{vT1}, 6, v{vT1}")
    a(f"v_and_b32 v{vT2}, 3, v{vL}\nv_lshlrev_b32 v{vT2}, 4, v{vT2}\nv_add3_u32 v{vX}, v{vT0}, v{vT1}, v{vT2}")
    a(f"s_lshl_b32 s{sXo}, s{sB}, 2\ns_add_u32 s{sXo}, s{sXo}, s{sQb}\ns_lshl_b32 s{sXo}, s{sXo}, 15")
    a(f"s_lshl_b32 s{sWo}, s{sW}, 16\ns_lshl_b32 s{sT}, s{sHead}, 8\ns_add_u32 s{sWo}, s{sWo}, s{sT}")
    a(f"s_lshl_b32 s{sKV}, s{sB}, 5\ns_add_u32 s{sKV}, s{sKV}, s{sHead}\ns_lshl_b32 s{sKV}, s{sKV}, 17\ns_lshl_b32 s{sT}, s{sQb}, 12\ns_add_u32 s{sKV}, s{sKV}, s{sT}")
    a(f"s_lshl_b32 s{sLw}, s{sW}, 12\ns_lshl_b32 s{sLw2}, s{sW}, 11")
    a("s_waitcnt lgkmcnt(0)")
    a(f"s_cmp_eq_u32 s{sBr}, 1")
    srd(SW,10,20,0 if opt('nowq','0')=='1' else 0x400000); srd(SX,4,14,0 if opt('nox','0')=='1' else 0x100000)
    ksz=0 if opt('nokv','0')=='1' else 0x2000000
    srd(80,12,22,0x400000); srd(SK,6,16,ksz); srd(SV,8,18,ksz); srd(SO,28,None,0x1100000)
    def ld_w(j):
        def f(n):
            if n==0: a(f"s_bfe_u32 s{sT2}, s{sJ0}, {0x40000+4*j:#x}\ns_lshl_b32 s{sT2}, s{sT2}, 19\ns_add_u32 s{sT2}, s{sT2}, s{sWo}")
            a(f"s_add_u32 m0, s{sLw2}, {(j&3)*16384+n*1024}")
            a(f"s_add_u32 s{sT2}, s{sT2}, {n*32768}")
            a(f"buffer_load_dwordx4 v{vDW}, s[{SW}:{SW+3}], s{sT2} offen {WP} lds"); vm.issue(("W",j))
        return [lambda n=n:f(n) for n in range(2)]
    def ld_x(j):
        def f(i):
            if i==0: a(f"s_bfe_u32 s{sT2}, s{sJ0}, {0x40000+4*j:#x}\ns_lshl_b32 s{sT2}, s{sT2}, 7\ns_add_u32 s{sT2}, s{sT2}, s{sXo}")
            a(f"buffer_load_dwordx4 {vr(vXF+16*(j&3)+4*i,4)}, v{vX}, s[{SX}:{SX+3}], s{sT2} offen offset:{i*1024} {XP}"); vm.issue(("X",j))
        return [lambda i=i:f(i) for i in range(4)]
    def pf_wo():
        a(f"s_lshr_b32 s{sT2}, s2, 1\ns_lshl_b32 s{sT2}, s{sT2}, 15\ns_add_u32 s{sT2}, s{sT2}, s{sLw}\nv_lshlrev_b32 v17, 6, v{vL}")
        a(f"buffer_load_dword v18, v17, s[80:83], s{sT2} offen"); vm.issue("pf")
    seq=[("K",0)]
    for t in range(7): seq+=[("K",t+1),("V",t)]
    seq+=[("V",7)]
    slot=lambda n:((n+2)%5)*32768
    def ld_kv(n,p):
        ty,t=seq[n]
        def f():
            a(f"s_add_u32 m0, s{sLw}, {slot(n)}\ns_add_u32 s{sT}, s{sKV}, {t*16384}")
            r,v=(SK,vDK) if ty=="K" else (SV,vDV)
            a(f"buffer_load_dwordx4 v{v}, s[{r}:{r+3}], s{sT} offen offset:{p*1024} {KVP} lds"); vm.issue(("KV",n))
        return f
    KS=[int(c) for c in opt("ks","22222222")]; kq=[(n,p) for n in range(4) for p in range(4)]
    assert sum(KS)==16 and sum(KS[:6])<=12
    def kv_early(pos): return [ld_kv(*kq.pop(0)) for _ in range(KS[pos])]
    UP=int(opt("up","2"))
    w1=ld_w(1)
    for f in ld_w(0)+ld_x(0)+ld_x(1)+w1+(ld_w(2)+ld_x(2) if UP==3 else []): f()
    if opt("pfw","-")=="p": pf_wo()
    a(f"v_bfe_u32 v{vT0}, v{vL}, 2, 2\nv_lshrrev_b32 v{vT1}, 5, v{vL}\nv_bfe_u32 v{vT2}, v{vL}, 4, 1")
    a(f"v_mul_u32_u24 v{vT3}, 320, v{vT0}\nv_lshl_add_u32 v{vT3}, v{vT2}, 5, v{vT3}")
    a(f"v_lshl_add_u32 v{vVA}, v{vT1}, 13, v{vT3}\nv_and_b32 v{vT2}, 1, v{vL}\nv_lshl_add_u32 v{vVA}, v{vT2}, 4, v{vVA}\nv_bfe_u32 v{vT2}, v{vL}, 1, 1\nv_lshl_add_u32 v{vVA}, v{vT2}, 3, v{vVA}")
    for db in range(1,4): a(f"v_xor_b32 v{vVA+db}, {db*64}, v{vVA}")
    a(f"v_lshl_add_u32 v{vV0}, v{vT1}, 12, v{vT3}\nv_and_b32 v{vT2}, 3, v{vL}\nv_lshl_add_u32 v{vV0}, v{vT2}, 3, v{vV0}")
    a(f"s_lshl_b32 s{sT}, s{sHalf}, 14\nv_add_u32 v{vV0}, s{sT}, v{vV0}")
    a(f"v_lshlrev_b32 v{vK0}, 12, v{vT0}\nv_bfe_u32 v{vT3}, v{vL}, 4, 1\nv_lshl_add_u32 v{vK0}, v{vT3}, 10, v{vK0}\nv_lshl_add_u32 v{vK0}, v{vT2}, 8, v{vK0}")
    a(f"v_lshl_add_u32 v{vT3}, v{vT2}, 2, v{vT0}\nv_xor_b32 v{vT3}, v{vT3}, v{vT1}\nv_lshl_add_u32 v{vK0}, v{vT3}, 4, v{vK0}\nv_add_u32 v{vK0}, s{sT}, v{vK0}")
    for r,v in ((sEv,0x55555555),(sOd,0xaaaaaaaa),(sLo,0x33333333),(sHi,0xcccccccc)): a(f"s_mov_b32 s{r}, {v:#x}\ns_mov_b32 s{r+1}, {v:#x}")
    a(f"s_mov_b32 s{sC}, 0x3e0293ee")
    if opt("prio","0")=="1": a(f"s_cmp_eq_u32 s{sHalf}, 0\ns_cbranch_scc1 L1_noprio\ns_setprio 1\nL1_noprio:")
    def tr_ops(j):
        X=vXF+16*(j&3); r=[]
        for src,dst,bit,mk,mo,perm in ((X,vXT,1,sEv,sOd,"[1,0,3,2]"),(vXT,X,2,sLo,sHi,"[2,3,0,1]")):
            for m,want in ((mk,0),(mo,bit)):
                pre=f"s_mov_b64 vcc, s[{m}:{m+1}]\n"
                for i in range(4):
                    if (i&bit)!=want: continue
                    for d in range(4):
                        r.append(pre+f"v_cndmask_b32_dpp v{dst+4*i+d}, v{src+4*(i^bit)+d}, v{src+4*i+d}, vcc quad_perm:{perm} row_mask:0xf bank_mask:0xf"); pre=""
        return r
    segs=[("W",j) for j in range(8)]+[("KV",n) for n in range(16)]
    abase={"K":None,"V":None}
    def set_addr(sg):
        if sg[0]=="W": return []
        ty,t=seq[sg[1]]; b=slot(sg[1])&~0xffff
        if abase[ty]==b: return []
        abase[ty]=b
        if ty=="K": return [f"v_add_u32 v{vKA}, {b}, v{vK0}"]+[f"v_xor_b32 v{vKA+s}, {s<<5}, v{vKA}" for s in range(1,8)]
        return [f"v_add_u32 v{vVA}, {b}, v{vV0}"]+[f"v_xor_b32 v{vVA+d}, {d*64}, v{vVA}" for d in range(1,4)]
    vNM=240; Sb=lambda t:vS+32*(t&1); Pb=lambda t:vNM if t==7 else vP
    def idx(sg,i): return (i&3,i>>2) if sg in (("W",7),("KV",15)) else (i>>2,i&3)
    def rd(sg,i):
        F=vF+4*(i&7); ks,db=idx(sg,i)
        if sg[0]=="W":
            for r in range(2): a(f"ds_read_b64_tr_b16 {vr(F+2*r,2)}, v{vVA+db} offset:{(sg[1]&3)*16384+(8*ks+4*r)*256}"); lg.issue((sg,i))
            return
        ty,t=seq[sg[1]]; off=slot(sg[1])&0xffff
        if ty=="K": a(f"ds_read_b128 {vr(F,4)}, v{vKA+(i&7)} offset:{off+(i>>3)*2048}"); lg.issue((sg,i))
        else:
            for r in range(2): a(f"ds_read_b64_tr_b16 {vr(F+2*r,2)}, v{vVA+db} offset:{off+(32*r+4*ks)*256}"); lg.issue((sg,i))
    def mm(sg,i):
        F=vF+4*(i&7); ks,db=idx(sg,i)
        if sg[0]=="W": mfma(vO+16*db,F,vXF+16*(sg[1]&3)+4*ks,"0" if sg[1]==0 and ks==0 else vO+16*db); return
        ty,t=seq[sg[1]]
        if ty=="K": mfma(Sb(t)+16*(i>>3),F,vQ+4*(i&7),("0" if t==0 else vNM) if (i&7)==0 else Sb(t)+16*(i>>3))
        else: mfma(vO+16*db,F,Pb(t)+4*ks,"0" if t==0 and ks==0 else vO+16*db)
    def max_a(S): return [f"v_max3_f32 v{vT0}, v{S}, v{S+1}, v{S+2}"]+[f"v_max3_f32 v{vT0}, v{S+i}, v{S+i+1}, v{vT0}" for i in range(3,15,2)]
    def max_b(S): return [f"v_max3_f32 v{vT1}, v{S+16}, v{S+17}, v{S+15}"]+[f"v_max3_f32 v{vT1}, v{S+i}, v{S+i+1}, v{vT1}" for i in range(18,32,2)]+[f"v_max_f32 v{vT0}, v{vT0}, v{vT1}"]
    xh=f"v_mov_b32 v{vT1}, v{vT0}\ns_nop 1\nv_permlane32_swap_b32 v{vT0}, v{vT1}\ns_nop 1\nv_max_f32 v{vT0}, v{vT0}, v{vT1}"
    def check(t):
        S=Sb(t); r=f"v_cmp_lt_f32 vcc, 0x41000000, v{vT0}\ns_nop 0\ns_cbranch_vccz L1_ok{t}\n{xh}\nv_cmp_lt_f32 vcc, 0x41000000, v{vT0}\ns_nop 1\n"
        r+=f"v_cndmask_b32 v{vT0}, 0, v{vT0}, vcc\nv_exp_f32 v{vAl}, -v{vT0}\n"
        r+="".join(f"v_sub_f32 v{S+i}, v{S+i}, v{vT0}\n" for i in range(32))+"".join(f"v_sub_f32 v{vNM+i}, v{vNM+i}, v{vT0}\n" for i in range(16))
        return r+f"v_mul_f32 v{vLs}, v{vAl}, v{vLs}\nv_mul_f32 v{vLs2}, v{vAl}, v{vLs2}\nL1_ok{t}:"
    NE=int(opt("ne","16"))
    def cvt(t,i): return f"v_cvt_pk_bf16_f32 v{Pb(t)+i//2}, v{Sb(t)+i}, v{Sb(t)+i+1}"
    def sm(t,lo,hi,pack,extra=[]):
        S=Sb(t); r=[]; extra=list(extra)
        for i in range(lo,hi+2,2):
            if i<hi:
                if t==0: r+=[f"v_sub_f32 v{S+k}, v{S+k}, v{vT0}" for k in (i,i+1)]
                r+=[f"v_exp_f32 v{S+k}, v{S+k}" for k in (i,i+1)]
            if extra: r.append(extra.pop(0))
            if i>lo:
                p=i-2
                if t==0 and p==0: r+=[f"v_mov_b32 v{vLs}, v{S}",f"v_mov_b32 v{vLs2}, v{S+1}"]
                else: r+=[f"v_add_f32 v{vLs}, v{vLs}, v{S+p}",f"v_add_f32 v{vLs2}, v{vLs2}, v{S+p+1}"]
                if pack: r.append(cvt(t,p))
        return r+extra
    def qcv(db): return [x for i in range(8) for x in (f"v_mul_f32 v{vO+16*db+2*i}, s{sC}, v{vO+16*db+2*i}",f"v_mul_f32 v{vO+16*db+2*i+1}, s{sC}, v{vO+16*db+2*i+1}")]+[f"v_cvt_pk_bf16_f32 v{vQ+8*db+i}, v{vO+16*db+2*i}, v{vO+16*db+2*i+1}" for i in range(8)]
    def ofin(db):
        r=[]
        for f in (2*db,2*db+1):
            r+=[f"v_mul_f32 v{vO+8*f+i}, v{vT0}, v{vO+8*f+i}" for i in range(8)]+[f"v_cvt_pk_bf16_f32 v{vS+4*f+i}, v{vO+8*f+2*i}, v{vO+8*f+2*i+1}" for i in range(4)]
            r.append(f"buffer_store_dwordx4 {vr(vS+4*f,4)}, v{vT3}, s[{SO}:{SO+3}], s{sT if f<4 else sT2} offen offset:{(f&3)*1024} {OSP}")
        return r
    lsum=[f"v_add_f32 v{vLs}, v{vLs}, v{vLs2}",f"v_lshlrev_b32 v{vT3}, 4, v{vL}",f"v_mov_b32 v{vT1}, v{vLs}\ns_nop 1\nv_permlane32_swap_b32 v{vLs}, v{vT1}\ns_nop 1\nv_add_f32 v{vLs}, v{vLs}, v{vT1}",f"v_rcp_f32 v{vT0}, v{vLs}",
      f"s_lshl_b32 s{sT}, s{sBr}, 3\ns_add_u32 s{sT}, s{sT}, s{sB}\ns_lshl_b32 s{sT}, s{sT}, 2\ns_add_u32 s{sT}, s{sT}, s{sQb}\ns_lshl_b32 s{sT}, s{sT}, 5\ns_add_u32 s{sT}, s{sT}, s{sHead}\ns_lshl_b32 s{sT}, s{sT}, 13\ns_add_u32 s{sT2}, s{sT}, 4096"]
    cost=lambda s: 2 if s.startswith("v_exp") else 1
    at=lambda e,l:[(e,x) for x in l]
    LSP=int(opt("lsp","4")); pend={}
    vm.wait([("W",0),("X",0)]); a("s_barrier"); stamp()
    for i in range(PD): rd(segs[0],i)
    l0=ld_w(2)+ld_x(2) if UP==2 else []
    if opt("pfw","-")=="q": l0.append(pf_wo)
    for k,s_ in enumerate(tr_ops(0)):
        a(s_)
        if k%4==0 and l0: l0.pop(0)()
    a("s_nop 1")
    for si,sg in enumerate(segs):
        nxt=segs[si+1] if si+1<len(segs) else None
        fill=[]; start=0; last=14; ty=None
        def sched(l,g0,sp):
            for k,f in enumerate(l): pend.setdefault(16*si+g0+int(k*sp),[]).append(f)
        if sg[0]=="W":
            j=sg[1]
            if j<7: vm.wait([("X",j+1)]); fill=at(0,tr_ops(j+1))
            else: fill=at(5,qcv(0))+at(9,qcv(1))+at(13,qcv(2)); start=5; last=15
            if j+3<8: sched(ld_x(j+3),0,2)
            l=(ld_w(j+3) if j+3<8 else [])+kv_early(j)+([pf_wo] if str(j)==opt("pfw","-") else [])
            if l: sched(l,BAR,(16-BAR)/len(l))
            if j==3: sched([lambda:a(f"s_cmp_lg_u32 s{sW}, 0\ns_cbranch_scc1 LF_nc\ns_lshl_b32 s62, s2, 8\ns_add_u32 s62, s62, 0x1000000\nv_mov_b32 v17, 0\nv_lshlrev_b32 v18, 2, v{vL}\nbuffer_store_dword v17, v18, s[{SO}:{SO+3}], s62 offen sc1\nLF_nc:")],8,1)
        else:
            n=sg[1]; ty,t=seq[n]
            if n+4<16: sched([ld_kv(n+4,p) for p in range(4)],BAR,LSP)
            if n==12:
                setup,pre,mid,main=tile_parts(); PRE="v"; assert BAR+3*LSP<=16+6
                sched([lambda:(a("s_mov_b32 s98, s2"),setup())],7,1)
            if n>=12:
                l=[lambda f=f:(f(),vm.issue("w2")) for f in pre[4*(n-12):4*(n-11)]]
                if n<15: sched(l,BAR,int(opt("psp","2")))
                else: sched([lambda:a("s_barrier")],0,1); sched(l,1,1)
            if opt("pfw","-")=="k%d"%n: sched([pf_wo],BAR,1)
            if n==0: fill=at(1,qcv(3))+at(10,max_a(Sb(0))); start=1; last=4
            elif n==1: fill=at(0,sm(0,0,32,True))
            elif ty=="K": fill=at(0,sm(t-1,NE,32,True,[cvt(t-1,i) for i in range(0,NE,2)]))
            elif t<7:
                fill=at(0,max_a(Sb(t+1)))+at(2,max_b(Sb(t+1))+[check(t+1)]+(sm(t+1,0,NE,False) if t<6 else sm(7,0,32,True))); last=15
            else:
                fill=at(0,lsum)+at(5,ofin(0))+at(9,ofin(1))+at(13,ofin(2)); last=15
        if opt("nofill","0")=="1": fill=[]
        if opt("nold","0")=="1": pend.clear()
        tot=sum(cost(x) for e,x in fill); acc=0
        for i in range(16):
            lg.wait([(sg,i)]); mm(sg,i)
            if i+PD<16: rd(sg,i+PD)
            elif nxt: rd(nxt,i+PD-16)
            if i==BAR and nxt:
                for s_ in set_addr(nxt): a(s_)
                vm.wait([nxt]); a("s_barrier" if opt("nobar","0")=="0" else "")
            for f in pend.pop(16*si+i,[]): f()
            while fill and i>=max(start,fill[0][0]) and acc<tot*(i+1-start)/(last+1-start):
                x=fill.pop(0)[1]; acc+=cost(x); a(x)
        assert not fill
        if sg==("KV",0):
            a("s_nop 7\ns_nop 3")
            for s_ in max_b(Sb(0))+[xh]+[f"v_sub_f32 v{vNM+i}, 0, v{vT0}" for i in range(16)]+["s_nop 1"]: a(s_)
        if ty=="V" and t<7:
            a(f"s_cbranch_vccz L1_nr{t}\ns_nop 7\ns_nop 3")
            for i in range(64): a(f"v_mul_f32 v{vO+i}, v{vAl}, v{vO+i}")
            a(f"L1_nr{t}:")
            if t==6: a("s_nop 1")
        if ST and (opt("st","0")=="1" or si in (0,6,9,21,23)): lg.done=len(lg.q); stamp()
    assert not pend
    a("s_nop 7")
    for s_ in ofin(3): a(s_)
    sG,sC_,sN=72,73,74; POL=opt("pol","sc1").replace("_"," "); SH=int(opt("sh","5"))
    a(f"s_mov_b32 s68, s26\ns_mov_b32 s69, s27\ns_mov_b32 s70, 256\ns_mov_b32 s71, 0x00020000")
    a(f"s_lshl_b32 s{sC_}, s{sBr}, 2\ns_lshr_b32 s{sG}, s2, 6\ns_add_u32 s{sG}, s{sG}, s{sC_}\ns_lshl_b32 s{sG}, s{sG}, {SH}")
    a(f"s_bfe_u32 s{sN}, s2, 0x20001\ns_add_u32 s{sC_}, s{sC_}, s{sN}\ns_lshl_b32 s{sC_}, s{sC_}, {SH}\ns_mov_b32 s{sN}, {int(opt('spin','4000'))}")
    a(f"v_mov_b32 v11, 1\nv_mov_b32 v9, 0x10000")
    stamp(); a("s_waitcnt vmcnt(0)"); stamp()
    if PRE=="e":
        for f in pre: f()
    a(f"s_barrier\ns_cmp_lg_u32 s{sW}, 0\ns_cbranch_scc1 LF_m0")
    MB=opt("mb","2")
    a(f"s_lshr_b32 s63, s2, 6\ns_lshl_b32 s63, s63, 1\ns_add_u32 s63, s63, s{sBr}\ns_lshl_b32 s63, s63, 8\ns_add_u32 s63, s63, 0x1000000\nv_lshlrev_b32 v7, 11, v{vL}\nv_mov_b32 v8, 1\nv_lshlrev_b32 v10, 2, v{vL}")
    arr=f"s_mov_b64 exec, 1\nbuffer_atomic_add v11, off, s[68:71], s{sG} sc0 sc1"
    snd=f"s_mov_b32 exec_lo, -1\ns_mov_b32 exec_hi, 0\nbuffer_store_dword v8, v7, s[{SO}:{SO+3}], s63 offen sc1"
    if MB=="1": a(f"{arr}\ns_waitcnt vmcnt(0)\nv_readfirstlane_b32 s78, v11\ns_nop 2\ns_and_b32 s78, s78, 0xffff\ns_cmp_lg_u32 s78, 31\ns_cbranch_scc1 LF_poll1\n{snd}\ns_mov_b64 exec, 1\ns_branch LF_poll1")
    else: a(f"s_lshl_b32 s78, s{sHead}, 2\ns_add_u32 s63, s63, s78\n{snd}\ns_mov_b64 exec, -1\nLF_m0:"); mid(); a(f"s_cmp_lg_u32 s{sW}, 0\ns_cbranch_scc1 LF_wait\ns_mov_b32 exec_hi, 0\ns_branch LF_poll1")
    a(f"LF_poll:\ns_mov_b32 s78, {int(opt('bo','2'))}\nLF_bo:\ns_nop 15\ns_nop 15\ns_nop 15\ns_sub_u32 s78, s78, 1\ns_cmp_lg_u32 s78, 0\ns_cbranch_scc1 LF_bo")
    a(f"LF_poll1:\nbuffer_load_dword v6, v10, s[{SO}:{SO+3}], s62 offen {POL}\ns_waitcnt vmcnt(0)\nv_cmp_ne_u32 vcc, 1, v6\ns_nop 3")
    a(f"s_cmp_eq_u64 vcc, 0\ns_cselect_b32 s77, 1, 0\ns_cbranch_scc1 LF_go\ns_sub_u32 s{sN}, s{sN}, 1\ns_cmp_lg_u32 s{sN}, 0\ns_cbranch_scc1 LF_poll")
    a((f"{arr}\n" if MB=="2" else "")+f"v_mov_b32 v6, v9\nbuffer_atomic_add v6, off, s[68:71], s{sC_} sc0 sc1\ns_waitcnt vmcnt(0)\nv_readfirstlane_b32 s78, v6\ns_nop 2\ns_and_b32 s78, s78, 0xffff\ns_cmp_eq_u32 s78, 32\ns_cselect_b32 s77, 1, 0\ns_branch LF_go2")
    a(f"LF_go:\n"+(f"{arr}\n" if MB=="2" else "")+f"LF_go2:\nv_mov_b32 v8, s77\nds_write_b32 v9, v8\ns_waitcnt lgkmcnt(0)\ns_mov_b64 exec, -1")
    a("LF_wait:\ns_barrier"+("\nv_mov_b32 v254, v19\ns_branch LF_end" if opt("notile","0")=="1" else ""))
    a(f"ds_read_b32 v8, v9\ns_mov_b32 s61, 0\ns_waitcnt lgkmcnt(0)\nv_readfirstlane_b32 s77, v8\ns_nop 2\ns_cmp_eq_u32 s77, 1\ns_cbranch_scc1 LF_mid\ns_waitcnt vmcnt(0)")
    a(f"LF_next:\ns_cmp_lg_u32 s61, 0\ns_cbranch_scc1 LF_more\nv_mov_b32 v10, 0x10004\ns_cmp_lg_u32 s{sW}, 0\ns_cbranch_scc1 LF_wait2")
    a(f"s_mov_b64 exec, 1\nds_write_b32 v10, v11\ns_waitcnt lgkmcnt(0)\ns_mov_b64 exec, -1\nLF_wait2:\ns_barrier\nds_read_b32 v8, v10\ns_waitcnt lgkmcnt(0)\nv_readfirstlane_b32 s77, v8\ns_nop 2")
    a(f"s_cmp_lt_u32 s77, 0x10000\ns_cbranch_scc1 LF_end\ns_and_b32 s77, s77, 0xffff\ns_cmp_lg_u32 s77, 31\ns_cbranch_scc1 LF_end")
    a(f"LF_more:\ns_cmp_eq_u32 s61, 32\ns_cbranch_scc1 LF_end\ns_waitcnt vmcnt(0)")
    a(f"s_lshr_b32 s98, s2, 6\ns_lshl_b32 s98, s98, 1\ns_add_u32 s98, s98, s{sBr}\ns_lshl_b32 s78, s61, 3\ns_add_u32 s98, s98, s78\ns_add_u32 s61, s61, 1\ns_barrier")
    setup()
    for f in pre: f()
    a("s_waitcnt vmcnt(0)"); mid(); a("LF_mid:"); stamp(); a("v_mov_b32 v254, v19" if ST else ""); STV[0]=254; main(); a("s_branch LF_next\nLF_end:\ns_waitcnt vmcnt(0)"); stamp_out(0,6,sW)
    a("L1_end:\ns_endpgm")
def tile_parts():
    SW,SO,SD=32,36,40
    sW=52; sBr,sRt,sCt,sT,sT2,sO0,sO1,sWo,sLw=range(84,93); sWb,sTb,sOb0,sOb1,sId=93,94,100,101,98
    vL,vOA,vDW,vA0,vA1,vT0,vT1,vT2,vT3=1,2,3,4,5,6,7,8,9
    vAcc=12; vWF=76; vOF=92; D=int(opt("d","8")); BAR2=opt("bar","0")=="1"; ORD=opt("ord","0")
    R=int(opt("r","0")); DW=8; vWR=140; assert D<=6 and R<=14; sLr=75; vA2,vA3=252,253; rb_=lambda s:(98304,131072,0,32768)[(s%8)>>1]+(s&1)*2048; wf=lambda s: vWR+8*s if s<R else vWF+(s&1)*8
    def order(g):
        if ORD=="0": return list(range(16))
        if ORD=="2": return [(i&8)|((i+2*g)&7) for i in range(16)]
        if ORD=="3": return [(i&12)|((i+g)&3) for i in range(16)]
        lead={0:g}; lead.update({1+g+4*k:4+g+4*k for k in range(3)}); rest=[b for b in range(16) if b%4!=g]
        if ORD=="4": rest[0:3]=[(g+k)&3 for k in (1,2,3)]
        return [lead[i] if i in lead else rest.pop(0) for i in range(16)]
    def setup():
        vT0,vT1,vT2=8,9,17; a(f's_lshl_b32 s{sLr}, s{sW}, 12')
        a(f"s_and_b32 s{sBr}, s{sId}, 1\ns_lshr_b32 s{sT}, s{sId}, 1\ns_and_b32 s{sT}, s{sT}, 3\ns_lshl_b32 s{sT}, s{sT}, 2\ns_lshr_b32 s{sT2}, s{sId}, 3\ns_and_b32 s{sT2}, s{sT2}, 3\ns_add_u32 s{sRt}, s{sT}, s{sT2}\ns_lshr_b32 s{sCt}, s{sId}, 5")
        a(f"v_lshlrev_b32 v{vOA}, 4, v{vL}")
        a(f"v_lshrrev_b32 v{vT0}, 3, v{vL}\nv_and_b32 v{vT1}, 7, v{vL}\nv_bfe_u32 v{vT2}, v{vL}, 4, 1\nv_lshlrev_b32 v{vT2}, 2, v{vT2}\nv_xor_b32 v{vT1}, v{vT1}, v{vT2}\nv_lshlrev_b32 v{vT1}, 4, v{vT1}\nv_lshl_add_u32 v{vDW}, v{vT0}, 10, v{vT1}")
        a(f"s_cmp_eq_u32 s{sBr}, 1")
        srd(SW,12,22,0 if opt('nowo','0')=='1' else 0x400000); srd(SO,28,None,0 if opt('noo','0')=='1' else 0x1000000); srd(SD,24,None,0x200000)
        a(f"s_lshl_b32 s{sO0}, s{sBr}, 4\ns_add_u32 s{sO0}, s{sO0}, s{sRt}\ns_lshl_b32 s{sO0}, s{sO0}, 19\ns_lshl_b32 s{sT}, s{sW}, 15\ns_add_u32 s{sO0}, s{sO0}, s{sT}\ns_add_u32 s{sO1}, s{sO0}, 0x40000")
        a(f"s_lshl_b32 s{sWo}, s{sW}, 19\ns_lshl_b32 s{sT}, s{sCt}, 7\ns_add_u32 s{sWo}, s{sWo}, s{sT}\ns_lshr_b32 s{sT}, s{sW}, 2\ns_lshl_b32 s{sT}, s{sT}, 1\ns_add_u32 s{sT}, s{sT}, s{sW}\ns_lshl_b32 s{sLw}, s{sT}, 14")
        a(f"s_add_u32 s{sT}, s{sRt}, s{sCt}\ns_and_b32 s{sT}, s{sT}, 3")
        for g in range(4):
            t=sum(b<<(4*i) for i,b in enumerate(order(g))); assert sorted(order(g))==list(range(16))
            if g==0: a(f"s_mov_b32 s{sTb}, {t&0xffffffff:#x}\ns_mov_b32 s{sTb+1}, {t>>32:#x}")
            else: a(f"s_cmp_eq_u32 s{sT}, {g}\ns_cmov_b32 s{sTb}, {t&0xffffffff:#x}\ns_cmov_b32 s{sTb+1}, {t>>32:#x}")
        a(f"v_bfe_u32 v{vT0}, v{vL}, 2, 2\nv_lshrrev_b32 v{vT1}, 5, v{vL}\nv_lshl_add_u32 v{vT1}, v{vT1}, 2, v{vT0}\nv_lshlrev_b32 v{vA0}, 7, v{vT1}")
        a(f"v_lshrrev_b32 v{vT0}, 1, v{vT0}\nv_lshl_add_u32 v{vA0}, v{vT0}, 6, v{vA0}\nv_and_b32 v{vT0}, 1, v{vL}\nv_lshl_add_u32 v{vA0}, v{vT0}, 5, v{vA0}")
        a(f"v_bfe_u32 v{vT0}, v{vL}, 4, 1\nv_lshl_add_u32 v{vA0}, v{vT0}, 4, v{vA0}\nv_bfe_u32 v{vT0}, v{vL}, 1, 1\nv_lshl_add_u32 v{vA0}, v{vT0}, 3, v{vA0}")
        a(f"v_add_u32 v{vA0}, s{sLr}, v{vA0}\nv_xor_b32 v{vA1}, 64, v{vA0}")
    vm=Cnt("vmcnt",63)
    def ldw(s,n):
        if s%2==0 and n==0: a(f"s_bfe_u32 s{sT}, s{sTb+(s>>4)}, {0x40000+4*((s>>1)&7):#x}\ns_lshl_b32 s{sWb}, s{sT}, 15\ns_add_u32 s{sWb}, s{sWb}, s{sWo}")
        a(f"s_add_u32 m0, s{sLr}, {rb_(s)+n*1024}\ns_add_u32 s{sT}, s{sWb}, {(16*(s&1)+8*n)*1024}")
        a(f"buffer_load_dwordx4 v{vDW}, s[{SW}:{SW+3}], s{sT} offen {WOP} lds")
    def ldo(s):
        if s%2==0: a(f"s_bfe_u32 s{sT}, s{sTb+(s>>4)}, {0x40000+4*((s>>1)&7):#x}\ns_lshl_b32 s{sT}, s{sT}, 11\ns_add_u32 s{sOb0}, s{sO0}, s{sT}\ns_add_u32 s{sOb1}, s{sO1}, s{sT}")
        for rb in range(2): a(f"buffer_load_dwordx4 {vr(vOF+8*(s%D)+4*rb,4)}, v{vOA}, s[{SO}:{SO+3}], s{sOb1 if rb else sOb0} offen offset:{(s&1)*1024} {OLP}"); vm.issue(s)
    def load(s):
        if BAR2 and s%2==0: a("s_barrier")
        if R+DW<=s+DW<32:
            for n in range(2): ldw(s+DW,n); vm.issue(s+DW)
        if s+D<32: ldo(s+D)
    pre=[lambda s=s,n=n:ldw(s,n) for s in range(DW) for n in range(2)]
    def mid():
        a(f"v_add_u32 v{vA2}, 98304, v{vA0}\nv_add_u32 v{vA3}, 98304, v{vA1}")
        for s in range(R):
            if s>=8 and s%2==0: a("s_waitcnt vmcnt(12)")
            wread(s)
            if s%2==1:
                a("s_waitcnt lgkmcnt(0)")
                for q in (s-1,s):
                    for n in range(2): ldw(q+DW,n)
    def wread(s):
        for nb in range(2):
            for rd in range(2): a(f"ds_read_b64_tr_b16 {vr(wf(s)+nb*4+rd*2,2)}, v{(vA0 if rb_(s)<65536 else vA2)+nb} offset:{rb_(s)%98304+rd*1024}")
    def main():
        NS=32
        for s in range(D):
            if BAR2 and s and s%2==0: a('s_barrier')
            ldo(s)
        vm.wait([0]); (None if R else wread(0))
        for s in range(NS):
            if s+1<NS:
                vm.wait([s+1])
                if s+1>=R: wread(s+1); a("s_waitcnt lgkmcnt(4)")
            else: a("s_waitcnt lgkmcnt(0)")
            for nb in range(2):
                for rb in range(2): mfma(vAcc+16*(2*nb+rb), wf(s)+nb*4, vOF+8*(s%D)+4*rb, "0" if s==0 else vAcc+16*(2*nb+rb))
            if s%8==0: stamp()
            if s+D<NS: load(s)
        a(f"v_add_u32 v{vT0}, s{sLw}, v{vOA}\ns_lshl_b32 s{sT}, s{sW}, 11\nv_add_u32 v{vT1}, s{sT}, v{vOA}\nv_add_u32 v{vT2}, 0x18000, v{vT1}\ns_barrier\ns_nop 7")
        for p in range(16): a(f"ds_write_b128 v{vT0}, {vr(vAcc+4*p,4)} offset:{p*1024}")
        a("s_waitcnt lgkmcnt(0)"); stamp(); a("s_barrier"); stamp()
        for w in range(8):
            for p in range(2): a(f"ds_read_b128 {vr(vAcc+8*w+4*p,4)}, v{vT1 if w<4 else vT2} offset:{(w&3)*16384+p*1024}")
        a(f"v_and_b32 v{vT0}, 31, v{vL}\nv_lshlrev_b32 v{vT0}, 11, v{vT0}\nv_lshrrev_b32 v{vT3}, 5, v{vL}\nv_lshl_add_u32 v{vT0}, v{vT3}, 5, v{vT0}")
        a(f"s_lshl_b32 s{sT}, s{sRt}, 1\ns_bfe_u32 s{sT2}, s{sW}, 0x10001\ns_add_u32 s{sT}, s{sT}, s{sT2}\ns_lshl_b32 s{sT}, s{sT}, 16")
        a(f"s_lshl_b32 s{sT2}, s{sBr}, 10\ns_add_u32 s{sT}, s{sT}, s{sT2}\ns_lshl_b32 s{sT2}, s{sCt}, 7\ns_add_u32 s{sT}, s{sT}, s{sT2}")
        a(f"s_lshr_b32 s{sT2}, s{sW}, 2\ns_lshl_b32 s{sT2}, s{sT2}, 6\ns_add_u32 s{sT}, s{sT}, s{sT2}\ns_and_b32 s{sT2}, s{sW}, 1\ns_lshl_b32 s{sT2}, s{sT2}, 4\ns_add_u32 s{sT}, s{sT}, s{sT2}")
        for w in range(1,8):
            a(f"s_waitcnt lgkmcnt({14-2*w})")
            for i in range(8): a(f"v_add_f32 v{vAcc+i}, v{vAcc+i}, v{vAcc+8*w+i}")
        for i in range(4): a(f"v_cvt_pk_bf16_f32 v{vWF+i}, v{vAcc+2*i}, v{vAcc+2*i+1}")
        a(f"buffer_store_dwordx4 {vr(vWF,4)}, v{vT0}, s[{SD}:{SD+3}], s{sT} offen {OUTP}")
    return setup,pre,mid,main
kernel1()
a('.section .rodata,"a"\n.p2align 6'); a(desc(K1,256))
print("\n".join(o))
```

```python
import sys, os
NAME="concat_heads__mha_block_cached__gqa_block_cached__near_ridge"
OPT=dict(a.split("=") for a in sys.argv[1:] if "=" in a)
def opt(k,d): return OPT.get(k,d)
KVP=opt("kv","nt"); WP=opt("w",""); XP=opt("x",""); OSP=opt("os",""); OLP=opt("ol",""); WOP=opt("wo",""); OUTP=opt("out","")
o=[]
def a(s): o.append(s)
def vr(b,n): return f"v[{b}:{b+n-1}]"
def desc(name,vg):
    return f'''.amdhsa_kernel {name}
  .amdhsa_next_free_vgpr {vg}
  .amdhsa_next_free_sgpr 102
  .amdhsa_accum_offset {vg}
  .amdhsa_group_segment_fixed_size 0
  .amdhsa_kernarg_size 104
  .amdhsa_user_sgpr_count 2
  .amdhsa_user_sgpr_kernarg_segment_ptr 1
  .amdhsa_system_sgpr_workgroup_id_x 1
.end_amdhsa_kernel'''
def head(name): a(f".globl {name}\n.p2align 8\n.type {name},@function\n{name}:")
def srd(d,a_lo,b_lo,size):
    if b_lo is None: a(f"s_mov_b32 s{d}, s{a_lo}\ns_mov_b32 s{d+1}, s{a_lo+1}")
    else: a(f"s_cselect_b32 s{d}, s{b_lo}, s{a_lo}\ns_cselect_b32 s{d+1}, s{b_lo+1}, s{a_lo+1}")
    a(f"s_mov_b32 s{d+2}, {size:#x}\ns_mov_b32 s{d+3}, 0x00020000")
def mfma(d,x,y,c): a(f"v_mfma_f32_32x32x16_bf16 {vr(d,16)}, {vr(x,4)}, {vr(y,4)}, {c if isinstance(c,str) else vr(c,16)}")
ST=opt("st","0")!="0"
def stamp(real=False):
    if not ST: return
    a(f"{'s_memrealtime' if real else 's_memtime'} s[96:97]\ns_waitcnt lgkmcnt(0)\ns_mov_b32 m0, s99\ns_add_u32 s99, s99, 1\nv_writelane_b32 v{STV[0]}, s96, m0")
STV=[0]
def stamp_init(v):
    STV[0]=v
    if ST: a(f"s_mov_b32 s99, 0\nv_mov_b32 v{v}, 0"); stamp(True); stamp()
def stamp_out(k,vt,sw):
    if not ST: return
    stamp(); stamp(True)
    a(f"s_mov_b32 s92, s28\ns_mov_b32 s93, s29\ns_mov_b32 s94, 0x10000000\ns_mov_b32 s95, 0x20000")
    a(f"s_lshl_b32 s96, s2, 3\ns_add_u32 s96, s96, s{sw}\ns_lshl_b32 s96, s96, 8\ns_add_u32 s96, s96, {0x2000000+k*0x80000}")
    a(f"v_and_b32 v{vt}, 63, v0\nv_lshlrev_b32 v{vt}, 2, v{vt}\nbuffer_store_dword v{STV[0]}, v{vt}, s[92:95], s96 offen\ns_waitcnt vmcnt(0)")
K1=NAME+"_kernel"; K2=NAME+"_oproj_kernel"
a(open("cdna_kernels/"+NAME+".s.ref").read().split("; Override")[0].rstrip())
a(f"; @launch grid=(256,1,1) block=(512,1,1) lds=163840")
a("""; One launch, 256 workgroups. Phase 1: q-projection + attention for (branch, head, batch pair), O kept in d_ws.
; their O stores have completed, the consumer polls its mailbox a bounded number of times. A consumer that stops waiting
; records that in the group's word in d_debug (high half; the low half counts arrivals) and the last arrival of that
; group then computes every tile of the group, so the result does not depend on residency, order or placement.""")
a('.amdgcn_target "amdgcn-amd-amdhsa--gfx950"\n.text')
def ptrs():
    if opt("bad","0")=="1": a("s_and_b32 s3, s2, 7\ns_lshl_b32 s3, s3, 5\ns_lshr_b32 s2, s2, 3\ns_or_b32 s2, s2, s3")
    a("s_load_dwordx16 s[4:19], s[0:1], 0\ns_load_dwordx8 s[20:27], s[0:1], 64\ns_load_dwordx2 s[28:29], s[0:1], 96")
class Cnt:
    def __init__(s,name,mx): s.q=[]; s.name=name; s.mx=mx; s.done=0
    def issue(s,tag): s.q.append(tag)
    def wait(s,tags):
        idx=[i for i,t in enumerate(s.q) if t in tags]
        if not idx or idx[-1]<s.done: return
        n=len(s.q)-1-idx[-1]
        if n>s.mx: n=s.mx
        s.done=len(s.q)-n
        a(f"s_waitcnt {s.name}({n})")
def kernel1():
    head(K1)
    a("s_cmp_ge_u32 s2, 256\ns_cbranch_scc1 L1_end")
    stamp_init(19)
    if opt("dbg","0")=="1": a("s_memtime s[84:85]\ns_memrealtime s[86:87]")
    ptrs()
    SX,SK,SV,SW,SO=32,36,40,44,48
    sW,sHalf,sQb,sHead,sB,sBr=52,53,54,55,56,57
    sKV,sT,sT2,sC,sLw,sLw2,sJ0,sAny=58,59,60,64,65,66,67,78
    sEv,sOd,sLo,sHi=68,70,72,74
    sXo,sWo=76,77
    vL,vDK,vDV,vDW,vX,vK0,vV0,vW0=1,2,3,4,5,6,7,8
    vM,vLs,vLs2,vAl,vT0,vT1,vT2,vT3=9,10,11,12,13,14,15,16
    vVA=20; vKA=24
    vQ=32; vO=64; vS=128; vE=160; vP=192; vF=208
    vXF=128; vXT=192
    PD=int(opt("pd","6")); BAR=15-PD
    vm=Cnt("vmcnt",63); lg=Cnt("lgkmcnt",15)
    a(f"v_lshrrev_b32 v{vT0}, 6, v0\nv_and_b32 v{vL}, 63, v0\nv_readfirstlane_b32 s{sW}, v{vT0}")
    a(f"s_and_b32 s{sBr}, s2, 1\ns_lshr_b32 s{sT}, s2, 1\ns_and_b32 s{sT}, s{sT}, 3\ns_lshl_b32 s{sT}, s{sT}, 3")
    a(f"s_lshr_b32 s{sT2}, s2, 3\ns_and_b32 s{sT2}, s{sT2}, 7\ns_add_u32 s{sHead}, s{sT}, s{sT2}")
    a(f"s_lshr_b32 s{sHalf}, s{sW}, 2\ns_and_b32 s{sQb}, s{sW}, 3\ns_lshr_b32 s{sB}, s2, 6\ns_lshl_b32 s{sB}, s{sB}, 1")
    ROT=opt("rot","0")
    def order(g):
        if ROT=="0": return list(range(8))
        if ROT=="2": return [g,4+g]+[x for k in (1,2,3) for x in ((g+k)&3,4+((g+k)&3))]
        if ROT=="3": return [(g+k)&3 for k in range(4)]+[4+((g+k)&3) for k in range(4)]
        lead={0:g,1+g:4+g}; rest=[(g+k)&3 for k in (1,2,3)]+[b for b in range(4,8) if b!=4+g]
        return [lead[i] if i in lead else rest.pop(0) for i in range(8)]
    a(f"s_lshr_b32 s{sT}, s2, 6\ns_add_u32 s{sT}, s{sT}, s{sT2}\ns_and_b32 s{sT}, s{sT}, 3")
    for g in range(4):
        t=sum(b<<(4*i) for i,b in enumerate(order(g))); assert sorted(order(g))==list(range(8))
        a(f"s_mov_b32 s{sJ0}, {t:#x}" if g==0 else f"s_cmp_eq_u32 s{sT}, {g}\ns_cmov_b32 s{sJ0}, {t:#x}")
    a(f"s_add_u32 s{sB}, s{sB}, s{sHalf}")
    a(f"v_lshrrev_b32 v{vT0}, 4, v{vL}\nv_and_b32 v{vT1}, 15, v{vL}\nv_lshlrev_b32 v{vT2}, 2, v{vT0}\nv_xor_b32 v{vT1}, v{vT1}, v{vT2}")
    a(f"v_lshlrev_b32 v{vT2}, 4, v{vT1}\nv_lshl_add_u32 v{vDW}, v{vT0}, 13, v{vT2}\nv_lshl_add_u32 v{vDV}, v{vT0}, 8, v{vT2}")
    a(f"v_xor_b32 v{vT1}, s{sQb}, v{vT1}\nv_lshlrev_b32 v{vT2}, 4, v{vT1}\nv_lshl_add_u32 v{vDK}, v{vT0}, 8, v{vT2}")
    a(f"v_bfe_u32 v{vT0}, v{vL}, 2, 3\nv_lshlrev_b32 v{vT0}, 12, v{vT0}\nv_lshrrev_b32 v{vT1}, 5, v{vL}\nv_lshlrev_b32 v{vT1}, 6, v{vT1}")
    a(f"v_and_b32 v{vT2}, 3, v{vL}\nv_lshlrev_b32 v{vT2}, 4, v{vT2}\nv_add3_u32 v{vX}, v{vT0}, v{vT1}, v{vT2}")
    a(f"s_lshl_b32 s{sXo}, s{sB}, 2\ns_add_u32 s{sXo}, s{sXo}, s{sQb}\ns_lshl_b32 s{sXo}, s{sXo}, 15")
    a(f"s_lshl_b32 s{sWo}, s{sW}, 16\ns_lshl_b32 s{sT}, s{sHead}, 8\ns_add_u32 s{sWo}, s{sWo}, s{sT}")
    a(f"s_lshl_b32 s{sKV}, s{sB}, 5\ns_add_u32 s{sKV}, s{sKV}, s{sHead}\ns_lshl_b32 s{sKV}, s{sKV}, 17\ns_lshl_b32 s{sT}, s{sQb}, 12\ns_add_u32 s{sKV}, s{sKV}, s{sT}")
    a(f"s_lshl_b32 s{sLw}, s{sW}, 12\ns_lshl_b32 s{sLw2}, s{sW}, 11")
    a("s_waitcnt lgkmcnt(0)")
    a(f"s_cmp_eq_u32 s{sBr}, 1")
    srd(SW,10,20,0 if opt('nowq','0')=='1' else 0x400000); srd(SX,4,14,0 if opt('nox','0')=='1' else 0x100000)
    ksz=0 if opt('nokv','0')=='1' else 0x2000000
    srd(80,12,22,0x400000); srd(SK,6,16,ksz); srd(SV,8,18,ksz); srd(SO,28,None,0x1100000)
    def ld_w(j):
        def f(n):
            if n==0: a(f"s_bfe_u32 s{sT2}, s{sJ0}, {0x40000+4*j:#x}\ns_lshl_b32 s{sT2}, s{sT2}, 19\ns_add_u32 s{sT2}, s{sT2}, s{sWo}")
            a(f"s_add_u32 m0, s{sLw2}, {(j&3)*16384+n*1024}")
            a(f"s_add_u32 s{sT2}, s{sT2}, {n*32768}")
            a(f"buffer_load_dwordx4 v{vDW}, s[{SW}:{SW+3}], s{sT2} offen {WP} lds"); vm.issue(("W",j))
        return [lambda n=n:f(n) for n in range(2)]
    def ld_x(j):
        def f(i):
            if i==0: a(f"s_bfe_u32 s{sT2}, s{sJ0}, {0x40000+4*j:#x}\ns_lshl_b32 s{sT2}, s{sT2}, 7\ns_add_u32 s{sT2}, s{sT2}, s{sXo}")
            a(f"buffer_load_dwordx4 {vr(vXF+16*(j&3)+4*i,4)}, v{vX}, s[{SX}:{SX+3}], s{sT2} offen offset:{i*1024} {XP}"); vm.issue(("X",j))
        return [lambda i=i:f(i) for i in range(4)]
    def pf_wo():
        a(f"s_lshr_b32 s{sT2}, s2, 1\ns_lshl_b32 s{sT2}, s{sT2}, 15\ns_add_u32 s{sT2}, s{sT2}, s{sLw}\nv_lshlrev_b32 v17, 6, v{vL}")
        a(f"buffer_load_dword v18, v17, s[80:83], s{sT2} offen"); vm.issue("pf")
    seq=[("K",0)]
    for t in range(7): seq+=[("K",t+1),("V",t)]
    seq+=[("V",7)]
    slot=lambda n:((n+2)%5)*32768
    def ld_kv(n,p):
        ty,t=seq[n]
        def f():
            a(f"s_add_u32 m0, s{sLw}, {slot(n)}\ns_add_u32 s{sT}, s{sKV}, {t*16384}")
            r,v=(SK,vDK) if ty=="K" else (SV,vDV)
            a(f"buffer_load_dwordx4 v{v}, s[{r}:{r+3}], s{sT} offen offset:{p*1024} {KVP} lds"); vm.issue(("KV",n))
        return f
    KS=[int(c) for c in opt("ks","22222222")]; kq=[(n,p) for n in range(4) for p in range(4)]
    assert sum(KS)==16 and sum(KS[:6])<=12
    def kv_early(pos): return [ld_kv(*kq.pop(0)) for _ in range(KS[pos])]
    UP=int(opt("up","2"))
    w1=ld_w(1)
    for f in ld_w(0)+ld_x(0)+ld_x(1)+w1+(ld_w(2)+ld_x(2) if UP==3 else []): f()
    if opt("pfw","-")=="p": pf_wo()
    a(f"v_bfe_u32 v{vT0}, v{vL}, 2, 2\nv_lshrrev_b32 v{vT1}, 5, v{vL}\nv_bfe_u32 v{vT2}, v{vL}, 4, 1")
    a(f"v_mul_u32_u24 v{vT3}, 320, v{vT0}\nv_lshl_add_u32 v{vT3}, v{vT2}, 5, v{vT3}")
    a(f"v_lshl_add_u32 v{vVA}, v{vT1}, 13, v{vT3}\nv_and_b32 v{vT2}, 1, v{vL}\nv_lshl_add_u32 v{vVA}, v{vT2}, 4, v{vVA}\nv_bfe_u32 v{vT2}, v{vL}, 1, 1\nv_lshl_add_u32 v{vVA}, v{vT2}, 3, v{vVA}")
    for db in range(1,4): a(f"v_xor_b32 v{vVA+db}, {db*64}, v{vVA}")
    a(f"v_lshl_add_u32 v{vV0}, v{vT1}, 12, v{vT3}\nv_and_b32 v{vT2}, 3, v{vL}\nv_lshl_add_u32 v{vV0}, v{vT2}, 3, v{vV0}")
    a(f"s_lshl_b32 s{sT}, s{sHalf}, 14\nv_add_u32 v{vV0}, s{sT}, v{vV0}")
    a(f"v_lshlrev_b32 v{vK0}, 12, v{vT0}\nv_bfe_u32 v{vT3}, v{vL}, 4, 1\nv_lshl_add_u32 v{vK0}, v{vT3}, 10, v{vK0}\nv_lshl_add_u32 v{vK0}, v{vT2}, 8, v{vK0}")
    a(f"v_lshl_add_u32 v{vT3}, v{vT2}, 2, v{vT0}\nv_xor_b32 v{vT3}, v{vT3}, v{vT1}\nv_lshl_add_u32 v{vK0}, v{vT3}, 4, v{vK0}\nv_add_u32 v{vK0}, s{sT}, v{vK0}")
    for r,v in ((sEv,0x55555555),(sOd,0xaaaaaaaa),(sLo,0x33333333),(sHi,0xcccccccc)): a(f"s_mov_b32 s{r}, {v:#x}\ns_mov_b32 s{r+1}, {v:#x}")
    a(f"s_mov_b32 s{sC}, 0x3e0293ee")
    if opt("prio","0")=="1": a(f"s_cmp_eq_u32 s{sHalf}, 0\ns_cbranch_scc1 L1_noprio\ns_setprio 1\nL1_noprio:")
    def tr_ops(j):
        X=vXF+16*(j&3); r=[]
        for src,dst,bit,mk,mo,perm in ((X,vXT,1,sEv,sOd,"[1,0,3,2]"),(vXT,X,2,sLo,sHi,"[2,3,0,1]")):
            for m,want in ((mk,0),(mo,bit)):
                pre=f"s_mov_b64 vcc, s[{m}:{m+1}]\n"
                for i in range(4):
                    if (i&bit)!=want: continue
                    for d in range(4):
                        r.append(pre+f"v_cndmask_b32_dpp v{dst+4*i+d}, v{src+4*(i^bit)+d}, v{src+4*i+d}, vcc quad_perm:{perm} row_mask:0xf bank_mask:0xf"); pre=""
        return r
    segs=[("W",j) for j in range(8)]+[("KV",n) for n in range(16)]
    abase={"K":None,"V":None}
    def set_addr(sg):
        if sg[0]=="W": return []
        ty,t=seq[sg[1]]; b=slot(sg[1])&~0xffff
        if abase[ty]==b: return []
        abase[ty]=b
        if ty=="K": return [f"v_add_u32 v{vKA}, {b}, v{vK0}"]+[f"v_xor_b32 v{vKA+s}, {s<<5}, v{vKA}" for s in range(1,8)]
        return [f"v_add_u32 v{vVA}, {b}, v{vV0}"]+[f"v_xor_b32 v{vVA+d}, {d*64}, v{vVA}" for d in range(1,4)]
    vNM=240; Sb=lambda t:vS+32*(t&1); Pb=lambda t:vNM if t==7 else vP
    def idx(sg,i): return (i&3,i>>2) if sg in (("W",7),("KV",15)) else (i>>2,i&3)
    def rd(sg,i):
        F=vF+4*(i&7); ks,db=idx(sg,i)
        if sg[0]=="W":
            for r in range(2): a(f"ds_read_b64_tr_b16 {vr(F+2*r,2)}, v{vVA+db} offset:{(sg[1]&3)*16384+(8*ks+4*r)*256}"); lg.issue((sg,i))
            return
        ty,t=seq[sg[1]]; off=slot(sg[1])&0xffff
        if ty=="K": a(f"ds_read_b128 {vr(F,4)}, v{vKA+(i&7)} offset:{off+(i>>3)*2048}"); lg.issue((sg,i))
        else:
            for r in range(2): a(f"ds_read_b64_tr_b16 {vr(F+2*r,2)}, v{vVA+db} offset:{off+(32*r+4*ks)*256}"); lg.issue((sg,i))
    def mm(sg,i):
        F=vF+4*(i&7); ks,db=idx(sg,i)
        if sg[0]=="W": mfma(vO+16*db,F,vXF+16*(sg[1]&3)+4*ks,"0" if sg[1]==0 and ks==0 else vO+16*db); return
        ty,t=seq[sg[1]]
        if ty=="K": mfma(Sb(t)+16*(i>>3),F,vQ+4*(i&7),("0" if t==0 else vNM) if (i&7)==0 else Sb(t)+16*(i>>3))
        else: mfma(vO+16*db,F,Pb(t)+4*ks,"0" if t==0 and ks==0 else vO+16*db)
    def max_a(S): return [f"v_max3_f32 v{vT0}, v{S}, v{S+1}, v{S+2}"]+[f"v_max3_f32 v{vT0}, v{S+i}, v{S+i+1}, v{vT0}" for i in range(3,15,2)]
    def max_b(S): return [f"v_max3_f32 v{vT1}, v{S+16}, v{S+17}, v{S+15}"]+[f"v_max3_f32 v{vT1}, v{S+i}, v{S+i+1}, v{vT1}" for i in range(18,32,2)]+[f"v_max_f32 v{vT0}, v{vT0}, v{vT1}"]
    xh=f"v_mov_b32 v{vT1}, v{vT0}\ns_nop 1\nv_permlane32_swap_b32 v{vT0}, v{vT1}\ns_nop 1\nv_max_f32 v{vT0}, v{vT0}, v{vT1}"
    def check(t):
        S=Sb(t); r=f"v_cmp_lt_f32 vcc, 0x41000000, v{vT0}\ns_nop 0\ns_cbranch_vccz L1_ok{t}\n{xh}\nv_cmp_lt_f32 vcc, 0x41000000, v{vT0}\ns_nop 1\n"
        r+=f"v_cndmask_b32 v{vT0}, 0, v{vT0}, vcc\nv_exp_f32 v{vAl}, -v{vT0}\n"
        r+="".join(f"v_sub_f32 v{S+i}, v{S+i}, v{vT0}\n" for i in range(32))+"".join(f"v_sub_f32 v{vNM+i}, v{vNM+i}, v{vT0}\n" for i in range(16))
        return r+f"v_mul_f32 v{vLs}, v{vAl}, v{vLs}\nv_mul_f32 v{vLs2}, v{vAl}, v{vLs2}\nL1_ok{t}:"
    NE=int(opt("ne","16"))
    def cvt(t,i): return f"v_cvt_pk_bf16_f32 v{Pb(t)+i//2}, v{Sb(t)+i}, v{Sb(t)+i+1}"
    def sm(t,lo,hi,pack,extra=[]):
        S=Sb(t); r=[]; extra=list(extra)
        for i in range(lo,hi+2,2):
            if i<hi:
                if t==0: r+=[f"v_sub_f32 v{S+k}, v{S+k}, v{vT0}" for k in (i,i+1)]
                r+=[f"v_exp_f32 v{S+k}, v{S+k}" for k in (i,i+1)]
            if extra: r.append(extra.pop(0))
            if i>lo:
                p=i-2
                if t==0 and p==0: r+=[f"v_mov_b32 v{vLs}, v{S}",f"v_mov_b32 v{vLs2}, v{S+1}"]
                else: r+=[f"v_add_f32 v{vLs}, v{vLs}, v{S+p}",f"v_add_f32 v{vLs2}, v{vLs2}, v{S+p+1}"]
                if pack: r.append(cvt(t,p))
        return r+extra
    def qcv(db): return [x for i in range(8) for x in (f"v_mul_f32 v{vO+16*db+2*i}, s{sC}, v{vO+16*db+2*i}",f"v_mul_f32 v{vO+16*db+2*i+1}, s{sC}, v{vO+16*db+2*i+1}")]+[f"v_cvt_pk_bf16_f32 v{vQ+8*db+i}, v{vO+16*db+2*i}, v{vO+16*db+2*i+1}" for i in range(8)]
    def ofin(db):
        r=[]
        for f in (2*db,2*db+1):
            r+=[f"v_mul_f32 v{vO+8*f+i}, v{vT0}, v{vO+8*f+i}" for i in range(8)]+[f"v_cvt_pk_bf16_f32 v{vS+4*f+i}, v{vO+8*f+2*i}, v{vO+8*f+2*i+1}" for i in range(4)]
            r.append(f"buffer_store_dwordx4 {vr(vS+4*f,4)}, v{vT3}, s[{SO}:{SO+3}], s{sT if f<4 else sT2} offen offset:{(f&3)*1024} {OSP}")
        return r
    lsum=[f"v_add_f32 v{vLs}, v{vLs}, v{vLs2}",f"v_lshlrev_b32 v{vT3}, 4, v{vL}",f"v_mov_b32 v{vT1}, v{vLs}\ns_nop 1\nv_permlane32_swap_b32 v{vLs}, v{vT1}\ns_nop 1\nv_add_f32 v{vLs}, v{vLs}, v{vT1}",f"v_rcp_f32 v{vT0}, v{vLs}",
      f"s_lshl_b32 s{sT}, s{sBr}, 3\ns_add_u32 s{sT}, s{sT}, s{sB}\ns_lshl_b32 s{sT}, s{sT}, 2\ns_add_u32 s{sT}, s{sT}, s{sQb}\ns_lshl_b32 s{sT}, s{sT}, 5\ns_add_u32 s{sT}, s{sT}, s{sHead}\ns_lshl_b32 s{sT}, s{sT}, 13\ns_add_u32 s{sT2}, s{sT}, 4096"]
    cost=lambda s: 2 if s.startswith("v_exp") else 1
    at=lambda e,l:[(e,x) for x in l]
    LSP=int(opt("lsp","4")); pend={}
    vm.wait([("W",0),("X",0)]); a("s_barrier"); stamp()
    for i in range(PD): rd(segs[0],i)
    l0=ld_w(2)+ld_x(2) if UP==2 else []
    if opt("pfw","-")=="q": l0.append(pf_wo)
    for k,s_ in enumerate(tr_ops(0)):
        a(s_)
        if k%4==0 and l0: l0.pop(0)()
    a("s_nop 1")
    for si,sg in enumerate(segs):
        nxt=segs[si+1] if si+1<len(segs) else None
        fill=[]; start=0; last=14; ty=None
        def sched(l,g0,sp):
            for k,f in enumerate(l): pend.setdefault(16*si+g0+int(k*sp),[]).append(f)
        if sg[0]=="W":
            j=sg[1]
            if j<7: vm.wait([("X",j+1)]); fill=at(0,tr_ops(j+1))
            else: fill=at(5,qcv(0))+at(9,qcv(1))+at(13,qcv(2)); start=5; last=15
            if j+3<8: sched(ld_x(j+3),0,2)
            l=(ld_w(j+3) if j+3<8 else [])+kv_early(j)+([pf_wo] if str(j)==opt("pfw","-") else [])
            if l: sched(l,BAR,(16-BAR)/len(l))
            if j==3: sched([lambda:a(f"s_cmp_lg_u32 s{sW}, 0\ns_cbranch_scc1 LF_nc\ns_lshl_b32 s62, s2, 8\ns_add_u32 s62, s62, 0x1000000\nv_mov_b32 v17, 0\nv_lshlrev_b32 v18, 2, v{vL}\nbuffer_store_dword v17, v18, s[{SO}:{SO+3}], s62 offen sc1\nLF_nc:")],8,1)
        else:
            n=sg[1]; ty,t=seq[n]
            if n+4<16: sched([ld_kv(n+4,p) for p in range(4)],BAR,LSP)
            if n==12:
                setup,pre,mid,main=tile_parts(); PRE="v"; assert BAR+3*LSP<=16+6
                sched([lambda:(a("s_mov_b32 s98, s2"),setup())],7,1)
            if n>=12:
                l=[lambda f=f:(f(),vm.issue("w2")) for f in pre[4*(n-12):4*(n-11)]]
                if n<15: sched(l,BAR,int(opt("psp","2")))
                else: sched([lambda:a("s_barrier")],0,1); sched(l,1,1)
            if opt("pfw","-")=="k%d"%n: sched([pf_wo],BAR,1)
            if n==0: fill=at(1,qcv(3))+at(10,max_a(Sb(0))); start=1; last=4
            elif n==1: fill=at(0,sm(0,0,32,True))
            elif ty=="K": fill=at(0,sm(t-1,NE,32,True,[cvt(t-1,i) for i in range(0,NE,2)]))
            elif t<7:
                fill=at(0,max_a(Sb(t+1)))+at(2,max_b(Sb(t+1))+[check(t+1)]+(sm(t+1,0,NE,False) if t<6 else sm(7,0,32,True))); last=15
            else:
                fill=at(0,lsum)+at(5,ofin(0))+at(9,ofin(1))+at(13,ofin(2)); last=15
        if opt("nofill","0")=="1": fill=[]
        if opt("nold","0")=="1": pend.clear()
        tot=sum(cost(x) for e,x in fill); acc=0
        for i in range(16):
            lg.wait([(sg,i)]); mm(sg,i)
            if i+PD<16: rd(sg,i+PD)
            elif nxt: rd(nxt,i+PD-16)
            if i==BAR and nxt:
                for s_ in set_addr(nxt): a(s_)
                vm.wait([nxt]); a("s_barrier" if opt("nobar","0")=="0" else "")
            for f in pend.pop(16*si+i,[]): f()
            while fill and i>=max(start,fill[0][0]) and acc<tot*(i+1-start)/(last+1-start):
                x=fill.pop(0)[1]; acc+=cost(x); a(x)
        assert not fill
        if sg==("KV",0):
            a("s_nop 7\ns_nop 3")
            for s_ in max_b(Sb(0))+[xh]+[f"v_sub_f32 v{vNM+i}, 0, v{vT0}" for i in range(16)]+["s_nop 1"]: a(s_)
        if ty=="V" and t<7:
            a(f"s_cbranch_vccz L1_nr{t}\ns_nop 7\ns_nop 3")
            for i in range(64): a(f"v_mul_f32 v{vO+i}, v{vAl}, v{vO+i}")
            a(f"L1_nr{t}:")
            if t==6: a("s_nop 1")
        if ST and (opt("st","0")=="1" or si in (0,6,9,21,23)): lg.done=len(lg.q); stamp()
    assert not pend
    a("s_nop 7")
    for s_ in ofin(3): a(s_)
    sG,sC_,sN=72,73,74; POL=opt("pol","sc1").replace("_"," "); SH=int(opt("sh","5"))
    a(f"s_mov_b32 s68, s26\ns_mov_b32 s69, s27\ns_mov_b32 s70, 256\ns_mov_b32 s71, 0x00020000")
    a(f"s_lshl_b32 s{sC_}, s{sBr}, 2\ns_lshr_b32 s{sG}, s2, 6\ns_add_u32 s{sG}, s{sG}, s{sC_}\ns_lshl_b32 s{sG}, s{sG}, {SH}")
    a(f"s_bfe_u32 s{sN}, s2, 0x20001\ns_add_u32 s{sC_}, s{sC_}, s{sN}\ns_lshl_b32 s{sC_}, s{sC_}, {SH}\ns_mov_b32 s{sN}, {int(opt('spin','4000'))}")
    a(f"v_mov_b32 v11, 1\nv_mov_b32 v9, 0x10000")
    stamp(); a("s_waitcnt vmcnt(0)"); stamp()
    if PRE=="e":
        for f in pre: f()
    a(f"s_barrier\ns_cmp_lg_u32 s{sW}, 0\ns_cbranch_scc1 LF_m0")
    MB=opt("mb","2")
    a(f"s_lshr_b32 s63, s2, 6\ns_lshl_b32 s63, s63, 1\ns_add_u32 s63, s63, s{sBr}\ns_lshl_b32 s63, s63, 8\ns_add_u32 s63, s63, 0x1000000\nv_lshlrev_b32 v7, 11, v{vL}\nv_mov_b32 v8, 1\nv_lshlrev_b32 v10, 2, v{vL}")
    arr=f"s_mov_b64 exec, 1\nbuffer_atomic_add v11, off, s[68:71], s{sG} sc0 sc1"
    snd=f"s_mov_b32 exec_lo, -1\ns_mov_b32 exec_hi, 0\nbuffer_store_dword v8, v7, s[{SO}:{SO+3}], s63 offen sc1"
    if MB=="1": a(f"{arr}\ns_waitcnt vmcnt(0)\nv_readfirstlane_b32 s78, v11\ns_nop 2\ns_and_b32 s78, s78, 0xffff\ns_cmp_lg_u32 s78, 31\ns_cbranch_scc1 LF_poll1\n{snd}\ns_mov_b64 exec, 1\ns_branch LF_poll1")
    else: a(f"s_lshl_b32 s78, s{sHead}, 2\ns_add_u32 s63, s63, s78\n{snd}\ns_mov_b64 exec, -1\nLF_m0:"); mid(); a(f"s_cmp_lg_u32 s{sW}, 0\ns_cbranch_scc1 LF_wait\ns_mov_b32 exec_hi, 0\ns_branch LF_poll1")
    a("LF_poll:")
    a(f"LF_poll1:\nbuffer_load_dword v6, v10, s[{SO}:{SO+3}], s62 offen {POL}\ns_waitcnt vmcnt(0)\nv_cmp_ne_u32 vcc, 1, v6\ns_nop 3")
    a(f"s_cmp_eq_u64 vcc, 0\ns_cselect_b32 s77, 1, 0\ns_cbranch_scc1 LF_go\ns_sub_u32 s{sN}, s{sN}, 1\ns_cmp_lg_u32 s{sN}, 0\ns_cbranch_scc1 LF_poll")
    a((f"{arr}\n" if MB=="2" else "")+f"v_mov_b32 v6, v9\nbuffer_atomic_add v6, off, s[68:71], s{sC_} sc0 sc1\ns_waitcnt vmcnt(0)\nv_readfirstlane_b32 s78, v6\ns_nop 2\ns_and_b32 s78, s78, 0xffff\ns_cmp_eq_u32 s78, 32\ns_cselect_b32 s77, 1, 0\ns_branch LF_go2")
    a(f"LF_go:\n"+(f"{arr}\n" if MB=="2" else "")+f"LF_go2:\nv_mov_b32 v8, s77\nds_write_b32 v9, v8\ns_waitcnt lgkmcnt(0)\ns_mov_b64 exec, -1")
    a("LF_wait:\ns_barrier"+("\nv_mov_b32 v254, v19\ns_branch LF_end" if opt("notile","0")=="1" else ""))
    a(f"ds_read_b32 v8, v9\ns_mov_b32 s61, 0\ns_waitcnt lgkmcnt(0)\nv_readfirstlane_b32 s77, v8\ns_nop 2\ns_cmp_eq_u32 s77, 1\ns_cbranch_scc1 LF_mid\ns_waitcnt vmcnt(0)")
    a(f"LF_next:\ns_cmp_lg_u32 s61, 0\ns_cbranch_scc1 LF_more\nv_mov_b32 v10, 0x10004\ns_cmp_lg_u32 s{sW}, 0\ns_cbranch_scc1 LF_wait2")
    a(f"s_mov_b64 exec, 1\nds_write_b32 v10, v11\ns_waitcnt lgkmcnt(0)\ns_mov_b64 exec, -1\nLF_wait2:\ns_barrier\nds_read_b32 v8, v10\ns_waitcnt lgkmcnt(0)\nv_readfirstlane_b32 s77, v8\ns_nop 2")
    a(f"s_cmp_lt_u32 s77, 0x10000\ns_cbranch_scc1 LF_end\ns_and_b32 s77, s77, 0xffff\ns_cmp_lg_u32 s77, 31\ns_cbranch_scc1 LF_end")
    a(f"LF_more:\ns_cmp_eq_u32 s61, 32\ns_cbranch_scc1 LF_end\ns_waitcnt vmcnt(0)")
    a(f"s_lshr_b32 s98, s2, 6\ns_lshl_b32 s98, s98, 1\ns_add_u32 s98, s98, s{sBr}\ns_lshl_b32 s78, s61, 3\ns_add_u32 s98, s98, s78\ns_add_u32 s61, s61, 1\ns_barrier")
    setup()
    for f in pre: f()
    a("s_waitcnt vmcnt(0)"); mid(); a("LF_mid:"); stamp(); a("v_mov_b32 v254, v19" if ST else ""); STV[0]=254; main(); a("s_branch LF_next\nLF_end:\ns_waitcnt vmcnt(0)"); stamp_out(0,6,sW)
    a("L1_end:\ns_endpgm")
def tile_parts():
    SW,SO,SD=32,36,40
    sW=52; sBr,sRt,sCt,sT,sT2,sO0,sO1,sWo,sLw=range(84,93); sWb,sTb,sOb0,sOb1,sId=93,94,100,101,98
    vL,vOA,vDW,vA0,vA1,vT0,vT1,vT2,vT3=1,2,3,4,5,6,7,8,9
    vAcc=12; vWF=76; vOF=92; D=int(opt("d","8")); BAR2=opt("bar","0")=="1"; ORD=opt("ord","0")
    R=int(opt("r","0")); DW=8; vWR=140; assert D<=6 and R<=14; sLr=75; vA2,vA3=252,253; rb_=lambda s:(98304,131072,0,32768)[(s%8)>>1]+(s&1)*2048; wf=lambda s: vWR+8*s if s<R else vWF+(s&1)*8
    def order(g):
        if ORD=="0": return list(range(16))
        if ORD=="2": return [(i&8)|((i+2*g)&7) for i in range(16)]
        if ORD=="3": return [(i&12)|((i+g)&3) for i in range(16)]
        lead={0:g}; lead.update({1+g+4*k:4+g+4*k for k in range(3)}); rest=[b for b in range(16) if b%4!=g]
        if ORD=="4": rest[0:3]=[(g+k)&3 for k in (1,2,3)]
        return [lead[i] if i in lead else rest.pop(0) for i in range(16)]
    def setup():
        vT0,vT1,vT2=8,9,17; a(f's_lshl_b32 s{sLr}, s{sW}, 12')
        a(f"s_and_b32 s{sBr}, s{sId}, 1\ns_lshr_b32 s{sT}, s{sId}, 1\ns_and_b32 s{sT}, s{sT}, 3\ns_lshl_b32 s{sT}, s{sT}, 2\ns_lshr_b32 s{sT2}, s{sId}, 3\ns_and_b32 s{sT2}, s{sT2}, 3\ns_add_u32 s{sRt}, s{sT}, s{sT2}\ns_lshr_b32 s{sCt}, s{sId}, 5")
        a(f"v_lshlrev_b32 v{vOA}, 4, v{vL}")
        a(f"v_lshrrev_b32 v{vT0}, 3, v{vL}\nv_and_b32 v{vT1}, 7, v{vL}\nv_bfe_u32 v{vT2}, v{vL}, 4, 1\nv_lshlrev_b32 v{vT2}, 2, v{vT2}\nv_xor_b32 v{vT1}, v{vT1}, v{vT2}\nv_lshlrev_b32 v{vT1}, 4, v{vT1}\nv_lshl_add_u32 v{vDW}, v{vT0}, 10, v{vT1}")
        a(f"s_cmp_eq_u32 s{sBr}, 1")
        srd(SW,12,22,0 if opt('nowo','0')=='1' else 0x400000); srd(SO,28,None,0 if opt('noo','0')=='1' else 0x1000000); srd(SD,24,None,0x200000)
        a(f"s_lshl_b32 s{sO0}, s{sBr}, 4\ns_add_u32 s{sO0}, s{sO0}, s{sRt}\ns_lshl_b32 s{sO0}, s{sO0}, 19\ns_lshl_b32 s{sT}, s{sW}, 15\ns_add_u32 s{sO0}, s{sO0}, s{sT}\ns_add_u32 s{sO1}, s{sO0}, 0x40000")
        a(f"s_lshl_b32 s{sWo}, s{sW}, 19\ns_lshl_b32 s{sT}, s{sCt}, 7\ns_add_u32 s{sWo}, s{sWo}, s{sT}\ns_lshr_b32 s{sT}, s{sW}, 2\ns_lshl_b32 s{sT}, s{sT}, 1\ns_add_u32 s{sT}, s{sT}, s{sW}\ns_lshl_b32 s{sLw}, s{sT}, 14")
        a(f"s_add_u32 s{sT}, s{sRt}, s{sCt}\ns_and_b32 s{sT}, s{sT}, 3")
        for g in range(4):
            t=sum(b<<(4*i) for i,b in enumerate(order(g))); assert sorted(order(g))==list(range(16))
            if g==0: a(f"s_mov_b32 s{sTb}, {t&0xffffffff:#x}\ns_mov_b32 s{sTb+1}, {t>>32:#x}")
            else: a(f"s_cmp_eq_u32 s{sT}, {g}\ns_cmov_b32 s{sTb}, {t&0xffffffff:#x}\ns_cmov_b32 s{sTb+1}, {t>>32:#x}")
        a(f"v_bfe_u32 v{vT0}, v{vL}, 2, 2\nv_lshrrev_b32 v{vT1}, 5, v{vL}\nv_lshl_add_u32 v{vT1}, v{vT1}, 2, v{vT0}\nv_lshlrev_b32 v{vA0}, 7, v{vT1}")
        a(f"v_lshrrev_b32 v{vT0}, 1, v{vT0}\nv_lshl_add_u32 v{vA0}, v{vT0}, 6, v{vA0}\nv_and_b32 v{vT0}, 1, v{vL}\nv_lshl_add_u32 v{vA0}, v{vT0}, 5, v{vA0}")
        a(f"v_bfe_u32 v{vT0}, v{vL}, 4, 1\nv_lshl_add_u32 v{vA0}, v{vT0}, 4, v{vA0}\nv_bfe_u32 v{vT0}, v{vL}, 1, 1\nv_lshl_add_u32 v{vA0}, v{vT0}, 3, v{vA0}")
        a(f"v_add_u32 v{vA0}, s{sLr}, v{vA0}\nv_xor_b32 v{vA1}, 64, v{vA0}")
    vm=Cnt("vmcnt",63)
    def ldw(s,n):
        if s%2==0 and n==0: a(f"s_bfe_u32 s{sT}, s{sTb+(s>>4)}, {0x40000+4*((s>>1)&7):#x}\ns_lshl_b32 s{sWb}, s{sT}, 15\ns_add_u32 s{sWb}, s{sWb}, s{sWo}")
        a(f"s_add_u32 m0, s{sLr}, {rb_(s)+n*1024}\ns_add_u32 s{sT}, s{sWb}, {(16*(s&1)+8*n)*1024}")
        a(f"buffer_load_dwordx4 v{vDW}, s[{SW}:{SW+3}], s{sT} offen {WOP} lds")
    def ldo(s):
        if s%2==0: a(f"s_bfe_u32 s{sT}, s{sTb+(s>>4)}, {0x40000+4*((s>>1)&7):#x}\ns_lshl_b32 s{sT}, s{sT}, 11\ns_add_u32 s{sOb0}, s{sO0}, s{sT}\ns_add_u32 s{sOb1}, s{sO1}, s{sT}")
        for rb in range(2): a(f"buffer_load_dwordx4 {vr(vOF+8*(s%D)+4*rb,4)}, v{vOA}, s[{SO}:{SO+3}], s{sOb1 if rb else sOb0} offen offset:{(s&1)*1024} {OLP}"); vm.issue(s)
    def load(s):
        if BAR2 and s%2==0: a("s_barrier")
        if R+DW<=s+DW<32:
            for n in range(2): ldw(s+DW,n); vm.issue(s+DW)
        if s+D<32: ldo(s+D)
    pre=[lambda s=s,n=n:ldw(s,n) for s in range(DW) for n in range(2)]
    def mid():
        a(f"v_add_u32 v{vA2}, 98304, v{vA0}\nv_add_u32 v{vA3}, 98304, v{vA1}")
        for s in range(R):
            if s>=8 and s%2==0: a("s_waitcnt vmcnt(12)")
            wread(s)
            if s%2==1:
                a("s_waitcnt lgkmcnt(0)")
                for q in (s-1,s):
                    for n in range(2): ldw(q+DW,n)
    def wread(s):
        for nb in range(2):
            for rd in range(2): a(f"ds_read_b64_tr_b16 {vr(wf(s)+nb*4+rd*2,2)}, v{(vA0 if rb_(s)<65536 else vA2)+nb} offset:{rb_(s)%98304+rd*1024}")
    def main():
        NS=32
        for s in range(D):
            if BAR2 and s and s%2==0: a('s_barrier')
            ldo(s)
        vm.wait([0]); (None if R else wread(0))
        for s in range(NS):
            if s+1<NS:
                vm.wait([s+1])
                if s+1>=R: wread(s+1); a("s_waitcnt lgkmcnt(4)")
            else: a("s_waitcnt lgkmcnt(0)")
            for nb in range(2):
                for rb in range(2): mfma(vAcc+16*(2*nb+rb), wf(s)+nb*4, vOF+8*(s%D)+4*rb, "0" if s==0 else vAcc+16*(2*nb+rb))
            if s%8==0: stamp()
            if s+D<NS: load(s)
        a(f"v_add_u32 v{vT0}, s{sLw}, v{vOA}\ns_lshl_b32 s{sT}, s{sW}, 11\nv_add_u32 v{vT1}, s{sT}, v{vOA}\nv_add_u32 v{vT2}, 0x18000, v{vT1}\ns_barrier\ns_nop 7")
        for p in range(16): a(f"ds_write_b128 v{vT0}, {vr(vAcc+4*p,4)} offset:{p*1024}")
        a("s_waitcnt lgkmcnt(0)"); stamp(); a("s_barrier"); stamp()
        for w in range(8):
            for p in range(2): a(f"ds_read_b128 {vr(vAcc+8*w+4*p,4)}, v{vT1 if w<4 else vT2} offset:{(w&3)*16384+p*1024}")
        a(f"v_and_b32 v{vT0}, 31, v{vL}\nv_lshlrev_b32 v{vT0}, 11, v{vT0}\nv_lshrrev_b32 v{vT3}, 5, v{vL}\nv_lshl_add_u32 v{vT0}, v{vT3}, 5, v{vT0}")
        a(f"s_lshl_b32 s{sT}, s{sRt}, 1\ns_bfe_u32 s{sT2}, s{sW}, 0x10001\ns_add_u32 s{sT}, s{sT}, s{sT2}\ns_lshl_b32 s{sT}, s{sT}, 16")
        a(f"s_lshl_b32 s{sT2}, s{sBr}, 10\ns_add_u32 s{sT}, s{sT}, s{sT2}\ns_lshl_b32 s{sT2}, s{sCt}, 7\ns_add_u32 s{sT}, s{sT}, s{sT2}")
        a(f"s_lshr_b32 s{sT2}, s{sW}, 2\ns_lshl_b32 s{sT2}, s{sT2}, 6\ns_add_u32 s{sT}, s{sT}, s{sT2}\ns_and_b32 s{sT2}, s{sW}, 1\ns_lshl_b32 s{sT2}, s{sT2}, 4\ns_add_u32 s{sT}, s{sT}, s{sT2}")
        for w in range(1,8):
            a(f"s_waitcnt lgkmcnt({14-2*w})")
            for i in range(8): a(f"v_add_f32 v{vAcc+i}, v{vAcc+i}, v{vAcc+8*w+i}")
        for i in range(4): a(f"v_cvt_pk_bf16_f32 v{vWF+i}, v{vAcc+2*i}, v{vAcc+2*i+1}")
        a(f"buffer_store_dwordx4 {vr(vWF,4)}, v{vT0}, s[{SD}:{SD+3}], s{sT} offen {OUTP}")
    return setup,pre,mid,main
kernel1()
a('.section .rodata,"a"\n.p2align 6'); a(desc(K1,256))
print("\n".join(o))
```
